```python
import torch

def _softmax(x, axis=-1):
    return torch.softmax(x, dim=axis)
def _gelu(x):
    return torch.nn.functional.gelu(x, approximate="tanh")
def _silu(x):
    return torch.nn.functional.silu(x)
def _sigmoid(x):
    return torch.sigmoid(x)
def _layernorm(x, axis=-1, eps=1e-5):
    m = x.mean(dim=axis, keepdim=True)
    v = x.var(dim=axis, keepdim=True, unbiased=False)
    return (x - m) / torch.sqrt(v + eps)
def _scatter_add(tgt, idx, src, axis=0):
    return tgt.clone().index_add_(axis, idx, src)
def _segment_sum(src, seg, n):
    out = torch.zeros((n,) + src.shape[1:], dtype=src.dtype)
    return out.index_add_(0, seg, src)
def _pad(x, pw):
    flat = tuple(v for pair in reversed(pw) for v in pair)
    return torch.nn.functional.pad(x, flat)

kernel_name = 'standalone__moe_arch_mod__decode'

def setup_inputs():

    _w = (lambda a: (lambda t: t.to(torch.bfloat16) if t.is_floating_point() else t)(torch.as_tensor(a)))
    B, S, D, F, C = 8, 1, 1024, 3584, 1
    return {
        "x": _w((lambda *s: torch.randn(*s, dtype=torch.bfloat16) * 0.2)(B, S, D)),
        "w_r": _w((lambda *s: torch.randn(*s, dtype=torch.bfloat16) * 0.2)(D)),
        "w_gate": _w((lambda *s: torch.randn(*s, dtype=torch.bfloat16) * 0.1)(D, F)),
        "w_up": _w((lambda *s: torch.randn(*s, dtype=torch.bfloat16) * 0.1)(D, F)),
        "w_down": _w((lambda *s: torch.randn(*s, dtype=torch.bfloat16) * 0.1)(F, D)),
    }

def reference(x, w_r, w_gate, w_up, w_down):
    B, S, D = x.shape
    C = 1
    r = x @ w_r
    idx = torch.argsort(-r, axis=-1)[:, :C]
    idx_e = (lambda x, n, axis: torch.repeat_interleave(x, n, dim=axis))(idx.reshape(B, C, 1), D, axis=2)
    x_sel = (lambda x, i, axis: torch.take_along_dim(x, i, dim=axis))(x, idx_e, axis=1)
    g = _silu(x_sel @ w_gate)
    u = x_sel @ w_up
    y = (g * u) @ w_down
    r_sel = _sigmoid((lambda x, i, axis: torch.take_along_dim(x, i, dim=axis))(r, idx, axis=1))
    y = y * r_sel.reshape(B, C, 1)
    b_off = (torch.arange(B) * S).reshape(B, 1)
    flat_idx = (idx + b_off).reshape(B * C)
    zero = (x * 0.0).reshape(B * S, D)
    upd = _scatter_add(zero, flat_idx, y.reshape(B * C, D), axis=0)
    return x + upd.reshape(B, S, D)
```

```python
import sys

KN = "standalone__moe_arch_mod__decode_kernel"
HEADER = """; Kernarg layout for this problem (64 bytes, ptrs only, base s[0:1]):
; @launch grid=(256,1,1) block=(512,1,1) lds={lds}
.amdgcn_target "amdgcn-amd-amdhsa--gfx950"
.text
.globl {kn}
.p2align 8
.type {kn},@function
{kn}:
"""
FOOTER = """
.section .rodata,"a"
.p2align 6
.amdhsa_kernel {kn}
  .amdhsa_next_free_vgpr {vgpr}
  .amdhsa_next_free_sgpr 96
  .amdhsa_accum_offset {vgpr}
  .amdhsa_group_segment_fixed_size 0
  .amdhsa_kernarg_size 64
  .amdhsa_user_sgpr_count 2
  .amdhsa_user_sgpr_kernarg_segment_ptr 1
  .amdhsa_system_sgpr_workgroup_id_x 1
  .amdhsa_float_denorm_mode_32 3
.end_amdhsa_kernel
"""

WS_RS   = 0x1000
WS_H    = 0x10000
WS_PART = 0x40000
WS_P    = 0x200000
WS_SIZE = 0x400000
L_X = 0x10000
L_H = 0x11000
L_HALF = 0x8000
CJ = [0x2B5, 0x13F, 0x3D1, 0x087]
POLL_LIMIT = 1 << 16
WB_EVERY = 31

def gen(stamps=False, nt=True, lds=98304, local_plain=True, prefetch=True):
    o = []
    def a(s): o.append("    " + s)
    def L(s): o.append(s + ":")
    NT = " nt" if nt else ""
    LP = "" if local_plain else " sc1"
    def stamp(k):
        if stamps: a(f"s_memrealtime s[{76+2*k}:{77+2*k}]")
    def srd(d, lo, size):
        a(f"s_mov_b32 s{d}, s{lo}"); a(f"s_mov_b32 s{d+1}, s{lo+1}")
        a(f"s_mov_b32 s{d+2}, {size}"); a(f"s_mov_b32 s{d+3}, 0x20000")
    def fallback(lbl, cnt):
        a(f"s_add_u32 s{cnt}, s{cnt}, 1")
        a(f"s_and_b32 s74, s{cnt}, {WB_EVERY}")
        a(f"s_cbranch_scc1 {lbl}")
        a("buffer_wbl2 sc1")
        a(f"s_cmp_lt_u32 s{cnt}, {POLL_LIMIT}")
        a(f"s_cbranch_scc1 {lbl}")
        a("s_endpgm")

    END = "L_stamp" if stamps else "L_end"
    if stamps:
        for j in range(76, 90): a(f"s_mov_b32 s{j}, 0")
    stamp(0)
    a("s_load_dwordx16 s[4:19], s[0:1], 0")
    a("s_cmp_ge_u32 s2, 256")
    a("s_cbranch_scc1 L_end")
    a("v_lshrrev_b32 v2, 6, v0")
    a("v_and_b32 v1, 63, v0")
    a("v_readfirstlane_b32 s3, v2")
    a("s_and_b32 s56, s2, 7")
    a("s_bfe_u32 s57, s2, 0x20003")
    a("s_bfe_u32 s58, s2, 0x20005")
    a("s_lshr_b32 s59, s2, 7")
    a("s_and_b32 s60, s2, 1")
    a("s_lshl1_add_u32 s60, s58, s60")
    a("s_cmp_eq_u32 s60, 7")
    a("s_cselect_b32 s60, 0, s60")
    a("s_mul_i32 s61, s56, 7")
    a("s_add_u32 s61, s61, s60")
    a("s_lshl_b32 s62, s61, 7")
    a("s_lshl3_add_u32 s63, s57, s3")
    a(f"s_mul_i32 s63, s63, {32*7168}")
    a("s_add_u32 s62, s62, s63")
    a("v_lshrrev_b32 v3, 5, v0")
    a("v_and_b32 v4, 31, v0")
    a("v_lshlrev_b32 v5, 2, v3")
    a("v_xor_b32 v4, v4, v5")
    a("v_lshlrev_b32 v3, 11, v3")
    a("v_lshl_add_u32 v3, v4, 4, v3")
    a("s_lshl_b32 s64, s57, 9")
    a("s_lshl_b32 s65, s3, 10")
    a(f"s_add_u32 s65, s65, {L_X}")
    a("s_cmp_eq_u32 s58, 3")
    a("s_cbranch_scc1 L_half")

    a("v_lshrrev_b32 v4, 4, v1")
    a("v_and_b32 v5, 15, v1")
    a("v_lshlrev_b32 v6, 1, v4")
    a("v_xor_b32 v5, v5, v6")
    a("v_mul_u32_u24 v4, 7168, v4")
    a("v_lshl_add_u32 v4, v5, 4, v4")
    a("v_xor_b32 v5, 0x80, v4")
    a("s_mov_b32 s66, 56320")
    a("s_lshl_b32 s67, s3, 13")
    a("s_cmp_eq_u32 s59, 0")
    a("s_waitcnt lgkmcnt(0)")
    a("s_cselect_b32 s20, s8, s10"); a("s_cselect_b32 s21, s9, s11")
    a("s_mov_b32 s22, 7340032"); a("s_mov_b32 s23, 0x20000")
    srd(32, 4, 16384)
    stamp(1)
    a("s_cmp_ge_u32 s3, 4")
    a("s_cbranch_scc1 L_f_nox")
    a("s_mov_b32 m0, s65")
    a("s_nop 0")
    a("buffer_load_dwordx4 v3, s[32:35], s64 offen lds")
    L("L_f_nox")
    a("s_mov_b32 m0, s67")
    a(f"s_add_u32 s68, s62, {4*7168}")
    for i in range(4):
        a(f"buffer_load_dwordx4 v{4+(i&1)}, s[20:23], s62 offen offset:{i*1024}{NT} lds")
        if i < 3: a("s_add_u32 s62, s62, s66")
    a("s_addk_i32 m0, 0x1000")
    a("s_load_dwordx4 s[44:47], s[18:19], 0")
    for i in range(4):
        a(f"buffer_load_dwordx4 v{4+(i&1)}, s[20:23], s68 offen offset:{i*1024}{NT} lds")
        if i < 3: a("s_add_u32 s68, s68, s66")
    a("v_lshrrev_b32 v6, 2, v1")
    a("v_and_b32 v7, 7, v6")
    a("v_xor_b32 v7, s3, v7")
    a("v_lshlrev_b32 v6, 8, v6")
    a("v_lshl_add_u32 v6, v7, 5, v6")
    a("v_and_b32 v7, 3, v1")
    a("v_lshl_add_u32 v6, v7, 3, v6")
    o.extend(common_setup())
    a("s_cmp_ge_u32 s3, 4")
    a("s_cbranch_scc1 L_f_s0")
    a("s_waitcnt vmcnt(0)")
    L("L_f_s0")
    o.extend(tags())
    a("s_barrier")
    o.extend(xreads())
    def trreads(kbs, stride, half, base=0, addr=6):
        for n, kb in enumerate(kbs):
            a(f"ds_read_b64_tr_b16 v[{96+4*n}:{97+4*n}], v{addr} offset:{base + kb*stride}")
            a(f"ds_read_b64_tr_b16 v[{98+4*n}:{99+4*n}], v{addr} offset:{base + kb*stride + half}")
    def mfmas(kbs, first):
        nk = len(kbs)
        for n, kb in enumerate(kbs):
            a(f"s_waitcnt lgkmcnt({2*(nk-1-n)})")
            c = "0" if (first and n == 0) else "v[40:43]"
            a(f"v_mfma_f32_16x16x32_bf16 v[40:43], v[{64+4*kb}:{67+4*kb}], v[{96+4*n}:{99+4*n}], {c}")
    trreads([0, 1, 2, 3], 8192, 4096)
    mfmas([0, 1, 2, 3], True)
    a("s_cmp_ge_u32 s3, 6")
    a("s_cbranch_scc1 L_f_s1")
    a("s_waitcnt vmcnt(0)")
    L("L_f_s1")
    a("s_barrier")
    trreads([4, 5], 8192, 4096)
    mfmas([4, 5], False)
    a("s_waitcnt vmcnt(0)")
    a("s_barrier")
    stamp(2)
    trreads([6, 7], 8192, 4096)
    mfmas([6, 7], False)
    o.extend(publish(10, 69, LP))
    a("s_barrier")
    o.extend(wd_loads(NT, "L_p2"))

    L("L_p2")
    stamp(3)
    a("s_cmp_eq_u32 s3, 7")
    a("s_cbranch_scc1 L_final")
    a("buffer_load_dwordx4 v[44:47], v12, s[28:31], s71 offen sc1")
    a("s_waitcnt vmcnt(1)")
    a("s_barrier")
    a("s_cmp_ge_u32 s3, 4")
    a("s_cbranch_scc1 L_h_chk")
    trreads(range(7), 4096, 2048, addr=9)
    a("s_branch L_h_chk")
    L("L_h_poll")
    a("buffer_load_dwordx4 v[44:47], v12, s[28:31], s71 offen sc1")
    L("L_h_chk")
    a("s_waitcnt vmcnt(0)")
    for j in range(4): a(f"v_xor_b32 v{48+j}, s{44+j}, v{44+j}")
    a("v_or3_b32 v48, v48, v49, v50")
    a("v_or_b32 v48, v48, v51")
    a("v_and_b32 v48, 0xffff, v48")
    a("v_cmp_ne_u32 vcc, 0, v48")
    a("s_cbranch_vccz L_h_ok")
    fallback("L_h_poll", 75)
    L("L_h_ok")
    a("v_perm_b32 v48, v45, v44, s73")
    a("v_perm_b32 v49, v47, v46, s73")
    a("ds_write_b64 v13, v[48:49]")
    a("s_waitcnt lgkmcnt(0)")
    a("s_barrier")
    stamp(4)
    a("s_cmp_ge_u32 s3, 4")
    a(f"s_cbranch_scc1 {END}")
    for kb in range(7):
        a(f"ds_read_b128 v[{64+4*kb}:{67+4*kb}], v14 offset:{kb*512}")
    for kb in range(7):
        a(f"s_waitcnt lgkmcnt({6-kb})")
        c = "0" if kb == 0 else "v[40:43]"
        a(f"v_mfma_f32_16x16x32_bf16 v[40:43], v[{64+4*kb}:{67+4*kb}], v[{96+4*kb}:{99+4*kb}], {c}")
    o.extend(publish(11, 72, " sc1"))
    stamp(5)
    a(f"s_branch {END}")

    L("L_final")
    a("s_lshl1_add_u32 s60, s56, s59")
    a("s_bfe_u32 s61, s2, 0x40003")
    a("s_bfe_u32 s62, s60, 0x10001")
    a("v_lshrrev_b32 v20, 4, v1")
    a("s_lshl_b32 s62, s62, 2")
    a("v_add_u32 v20, s62, v20")
    a("s_lshl_b32 s63, s56, 7")
    a(f"s_add_u32 s63, s63, {WS_RS}")
    a("v_lshlrev_b32 v21, 4, v20")
    a("buffer_load_dwordx4 v[24:27], v21, s[28:31], s63 offen sc1")
    a("s_lshr_b32 s64, s60, 2")
    a("s_lshl2_add_u32 s64, s61, s64")
    a("s_and_b32 s65, s60, 1")
    a("s_lshl1_add_u32 s64, s64, s65")
    a("s_lshl_b32 s64, s64, 4")
    a("v_and_b32 v22, 7, v1")
    a("v_lshlrev_b32 v22, 1, v22")
    a("v_lshl_add_u32 v22, v20, 11, v22")
    a("buffer_load_ushort v23, v22, s[32:35], s64 offen")
    srd(36, 14, 16384)
    a("s_lshl_b32 s65, s61, 15")
    a("s_lshl_b32 s66, s60, 11")
    a("s_add_u32 s65, s65, s66")
    a(f"s_add_u32 s65, s65, {WS_P}")
    a("s_barrier")
    a("s_branch L_rs_chk")
    L("L_rs_poll")
    a("buffer_load_dwordx4 v[24:27], v21, s[28:31], s63 offen sc1")
    L("L_rs_chk")
    a("s_waitcnt vmcnt(0)")
    for j in range(4): a(f"v_xor_b32 v{28+j}, s{44+j}, v{24+j}")
    a("v_and_b32 v28, 0xffff, v28")
    a("v_or3_b32 v28, v28, v29, v30")
    a("v_or_b32 v28, v28, v31")
    a("v_cmp_ne_u32 vcc, 0, v28")
    a("s_cbranch_vccz L_rs_ok")
    fallback("L_rs_poll", 75)
    L("L_rs_ok")
    a("v_and_b32 v24, 0xffff0000, v24")
    a("v_lshlrev_b32 v23, 16, v23")
    a("s_barrier")
    L("L_y_poll")
    a("buffer_load_dwordx4 v[44:47], v12, s[28:31], s65 offen sc1")
    a("buffer_load_dwordx4 v[48:51], v12, s[28:31], s65 offen offset:1024 sc1")
    o.extend(check8("L_y_ok"))
    fallback("L_y_poll", 75)
    L("L_y_ok")
    stamp(5)
    for j in range(4): a(f"v_add_f32 v{44+j}, v{44+j}, v{48+j}")
    o.extend(redscatter(44))
    a("s_nop 1")
    a("v_add_f32_dpp v44, v44, v44 row_ror:8 row_mask:0xf bank_mask:0xf")
    a("v_cvt_pk_bf16_f32 v44, v44, v44")
    a("v_and_b32 v44, 0xffff0000, v44")
    a("v_mul_f32 v44, v44, v24")
    a("v_cvt_pk_bf16_f32 v44, v44, v44")
    a("v_and_b32 v44, 0xffff0000, v44")
    a("v_fma_f32 v44, v23, 0, v44")
    a("v_add_f32 v44, v23, v44")
    a("v_cvt_pk_bf16_f32 v44, v44, v44")
    a("s_mov_b32 exec_lo, 0x00ff00ff")
    a("s_mov_b32 exec_hi, 0x00ff00ff")
    a("buffer_store_short v44, v22, s[36:39], s64 offen")
    stamp(6)
    a("s_cmp_lg_u32 s2, 0")
    a(f"s_cbranch_scc1 {END}")
    for j in range(4): a(f"v_mov_b32 v{28+j}, s{44+j}")
    a("v_mov_b32 v32, 0")
    a("s_mov_b64 exec, 1")
    a("buffer_store_dwordx4 v[28:31], v32, s[28:31], 0 offen")
    a(f"s_branch {END}")

    L("L_half")
    if prefetch:
        a("s_cmp_lg_u32 s3, 7")
        a("s_cbranch_scc1 L_nopf")
        a("s_getpc_b64 s[66:67]")
        L("L_pc")
        a(f"s_sub_u32 s66, s66, L_pc-{KN}")
        a("s_subb_u32 s67, s67, 0")
        a("v_lshlrev_b32 v7, 7, v1")
        a("v_min_u32 v7, L_end-" + KN + ", v7")
        a("global_load_dword v60, v7, s[66:67]")
        L("L_nopf")
    a("s_cmp_eq_u32 s59, 0")
    a("s_waitcnt lgkmcnt(0)")
    a("s_cselect_b32 s20, s8, s10"); a("s_cselect_b32 s21, s9, s11")
    a("s_mov_b32 s22, 7340032"); a("s_mov_b32 s23, 0x20000")
    srd(32, 4, 16384)
    stamp(1)
    a("s_load_dwordx4 s[44:47], s[18:19], 0")
    o.extend(common_setup())
    a("s_cmp_ge_u32 s3, 4")
    a("s_cbranch_scc1 L_h_nox")
    a("s_mov_b32 m0, s65")
    a("s_nop 0")
    a("buffer_load_dwordx4 v3, s[32:35], s64 offen lds")
    L("L_h_nox")
    a("s_movk_i32 s66, 7168")
    a("v_mad_u32_u24 v4, v16, s66, v17")
    a("s_lshl_b32 s67, s3, 12")
    a(f"s_add_u32 m0, s67, {L_HALF}")
    for i, rows in enumerate([0, 16, 4, 20]):
        a(f"s_add_u32 s68, s62, {rows*7168 - i*1024}")
        a(f"buffer_load_dwordx4 v4, s[20:23], s68 offen offset:{i*1024}{NT} lds")
    o.extend(wd_loads(NT, "L_h_wd"))
    L("L_h_wd")
    a("s_lshl2_add_u32 s61, s59, s57")
    a("s_cmp_lg_u32 s61, 7")
    a("s_cbranch_scc1 L_h_nor")
    srd(40, 6, 2048)
    a("s_lshl_b32 s66, s3, 11")
    a("buffer_load_dwordx4 v[20:23], v12, s[32:35], s66 offen")
    a("buffer_load_dwordx4 v[24:27], v12, s[32:35], s66 offen offset:1024")
    a("buffer_load_dwordx4 v[28:31], v12, s[40:43], 0 offen")
    a("buffer_load_dwordx4 v[32:35], v12, s[40:43], 0 offen offset:1024")
    L("L_h_nor")
    o.extend(tags())
    a("s_waitcnt vmcnt(0)")
    a("s_barrier")
    stamp(2)
    a("s_cmp_ge_u32 s3, 4")
    a("s_cbranch_scc1 L_h_nop1")
    o.extend(xreads())
    trreads([0, 1, 2, 3], 4096, 2048, base=L_HALF, addr=9)
    mfmas([0, 1, 2, 3], True)
    trreads([4, 5, 6, 7], 4096, 2048, base=L_HALF, addr=9)
    mfmas([4, 5, 6, 7], False)
    o.extend(publish(10, 69, LP))
    L("L_h_nop1")
    a("s_cmp_eq_u32 s61, 7")
    a("s_cbranch_scc1 L_router")
    a("s_lshl3_add_u32 s62, s61, s3")
    a("s_mul_i32 s63, s56, 56")
    a("s_add_u32 s62, s62, s63")
    a("s_lshl_b32 s63, s62, 11")
    a(f"s_add_u32 s63, s63, {WS_PART}")
    a("s_lshl_b32 s62, s62, 8")
    a(f"s_add_u32 s62, s62, {WS_H}")
    a("v_and_b32 v20, 3, v1")
    a("v_mov_b32 v21, s44")
    for j in range(1, 4):
        a(f"v_mov_b32 v22, s{44+j}")
        a(f"v_cmp_eq_u32 vcc, {j}, v20")
        a("s_nop 1")
        a("v_cndmask_b32 v21, v21, v22, vcc")
    a("v_and_b32 v21, 0xffff, v21")
    a("v_lshrrev_b32 v22, 4, v1")
    a("v_bfe_u32 v23, v1, 3, 1")
    a("v_lshl_add_u32 v22, v23, 2, v22")
    a("v_and_b32 v23, 7, v1")
    a("v_lshlrev_b32 v23, 2, v23")
    a("v_lshl_add_u32 v22, v22, 5, v23")
    L("L_r_poll")
    a("buffer_load_dwordx4 v[44:47], v12, s[28:31], s63 offen sc1")
    a("buffer_load_dwordx4 v[48:51], v12, s[28:31], s63 offen offset:1024 sc1")
    o.extend(check8("L_r_ok"))
    fallback("L_r_poll", 75)
    L("L_r_ok")
    o.extend(redscatter2(44, 48))
    a("v_cvt_pk_bf16_f32 v44, v44, v48")
    a("v_lshlrev_b32 v45, 16, v44")
    a("v_and_b32 v44, 0xffff0000, v44")
    a("v_mul_f32 v46, 0xbfb8aa3b, v45")
    a("v_exp_f32 v46, v46")
    a("s_nop 0")
    a("v_add_f32 v46, 1.0, v46")
    a("v_rcp_f32 v46, v46")
    a("s_nop 0")
    a("v_mul_f32 v45, v45, v46")
    a("v_cvt_pk_bf16_f32 v45, v45, v45")
    a("v_and_b32 v45, 0xffff0000, v45")
    a("v_mul_f32 v45, v45, v44")
    a("v_cvt_pk_bf16_f32 v45, v45, v45")
    a("v_lshl_or_b32 v45, v45, 16, v21")
    a(f"buffer_store_dword v45, v22, s[28:31], s62 offen{LP}")
    a("s_branch L_p2")
    L("L_router")
    a("v_mov_b32 v36, 0")
    for j in range(8):
        a(f"v_dot2_f32_bf16 v36, v{20+j}, v{28+j}, v36")
    for ctl in ["quad_perm:[1,0,3,2]", "quad_perm:[2,3,0,1]", "row_half_mirror", "row_mirror"]:
        a("s_nop 2")
        a(f"v_add_f32_dpp v36, v36, v36 {ctl} row_mask:0xf bank_mask:0xf")
    a("v_mov_b32 v37, v36")
    a("s_nop 1")
    a("v_permlane16_swap_b32 v36, v37")
    a("v_add_f32 v36, v36, v37")
    a("v_mov_b32 v37, v36")
    a("s_nop 1")
    a("v_permlane32_swap_b32 v36, v37")
    a("v_add_f32 v36, v36, v37")
    a("v_cvt_pk_bf16_f32 v36, v36, v36")
    a("v_and_b32 v36, 0xffff0000, v36")
    a("v_mul_f32 v36, 0xbfb8aa3b, v36")
    a("v_exp_f32 v36, v36")
    a("s_nop 0")
    a("v_add_f32 v36, 1.0, v36")
    a("v_rcp_f32 v36, v36")
    a("s_and_b32 s62, s44, 0xffff")
    a("v_cvt_pk_bf16_f32 v36, v36, v36")
    a("v_lshl_or_b32 v36, v36, 16, s62")
    for j in range(1, 4): a(f"v_mov_b32 v{36+j}, s{44+j}")
    a("s_lshl_b32 s62, s56, 7")
    a("s_lshl4_add_u32 s62, s3, s62")
    a(f"s_add_u32 s62, s62, {WS_RS}")
    a("v_mov_b32 v20, 0")
    a("s_mov_b64 exec, 1")
    a("buffer_store_dwordx4 v[36:39], v20, s[28:31], s62 offen sc1")
    a("s_mov_b64 exec, -1")
    a("s_branch L_p2")

    if stamps:
        L("L_stamp")
        a("s_mov_b64 exec, -1")
        a("s_waitcnt lgkmcnt(0)")
        a("s_add_u32 s92, s18, 0x8000000"); a("s_addc_u32 s93, s19, 0")
        a("s_mov_b32 s94, 0x100000"); a("s_mov_b32 s95, 0x20000")
        a("s_lshl3_add_u32 s90, s2, s3"); a("s_lshl_b32 s90, s90, 6")
        for j in range(14): a(f"v_mov_b32 v{100+j}, s{76+j}")
        a("v_mov_b32 v114, 0x54414D50"); a("v_mov_b32 v115, 0x53"); a("v_mov_b32 v116, 0")
        a("s_mov_b64 exec, 1")
        for j in range(4): a(f"buffer_store_dwordx4 v[{100+4*j}:{103+4*j}], v116, s[92:95], s90 offen offset:{16*j}")
    L("L_end")
    a("s_endpgm")
    return HEADER.format(kn=KN, lds=lds) + "\n".join(o) + FOOTER.format(kn=KN, vgpr=128)

def I(lines): return ["    " + x if not x.endswith(":") else x for x in lines]

def common_setup():
    r = []
    a = r.append
    a("s_mov_b32 s24, s12"); a("s_mov_b32 s25, s13"); a("s_mov_b32 s26, 7340032"); a("s_mov_b32 s27, 0x20000")
    a("s_mov_b32 s28, s18"); a("s_mov_b32 s29, s19"); a(f"s_mov_b32 s30, {WS_SIZE}"); a("s_mov_b32 s31, 0x20000")
    a("s_mov_b32 s75, 0")
    a("s_mov_b32 s73, 0x07060302")
    a("v_mov_b32 v15, 0x3ff")
    a("v_lshlrev_b32 v12, 4, v1")
    a("v_bfe_u32 v16, v1, 3, 2")
    a("v_lshrrev_b32 v17, 5, v1")
    a("v_lshl_add_u32 v16, v17, 3, v16")
    a("v_lshrrev_b32 v17, 4, v1")
    a("v_lshlrev_b32 v17, 1, v17")
    a("v_xor_b32 v17, v17, v1")
    a("v_and_b32 v17, 7, v17")
    a("v_lshlrev_b32 v17, 4, v17")
    a("v_lshl_add_u32 v8, v16, 11, v17")
    a("v_bfe_u32 v9, v1, 3, 2")
    a("v_xor_b32 v9, s3, v9")
    a("v_and_b32 v9, 3, v9")
    a("v_lshlrev_b32 v9, 5, v9")
    a("v_lshrrev_b32 v18, 2, v1")
    a("v_lshl_add_u32 v9, v18, 7, v9")
    a("v_and_b32 v18, 3, v1")
    a("v_lshl_add_u32 v9, v18, 3, v9")
    a("v_and_b32 v18, 7, v1")
    a("v_lshlrev_b32 v18, 4, v18")
    a("v_bfe_u32 v10, v1, 3, 1")
    a("v_lshl_add_u32 v10, v10, 11, v18")
    a("v_lshrrev_b32 v11, 4, v1")
    a("v_lshl_add_u32 v10, v11, 7, v10")
    a("v_lshrrev_b32 v11, 3, v1")
    a("v_lshl_add_u32 v11, v11, 11, v18")
    a("v_and_b32 v7, 7, v1")
    a("v_mul_u32_u24 v7, 576, v7")
    a("v_lshrrev_b32 v19, 4, v1")
    a("v_lshl_add_u32 v7, v19, 4, v7")
    a(f"v_add_u32 v7, {L_X}, v7")
    a("v_lshlrev_b32 v13, 3, v0")
    a(f"v_add_u32 v13, {L_H}, v13")
    a("v_lshl_add_u32 v14, v19, 7, v18")
    a(f"v_add_u32 v14, {L_H}, v14")
    a("s_lshl2_add_u32 s69, s61, s3")
    a("s_lshl_b32 s69, s69, 12")
    a("s_lshl2_add_u32 s70, s59, s57")
    a("s_lshl_b32 s70, s70, 8")
    a("s_add_u32 s69, s69, s70")
    a(f"s_add_u32 s69, s69, {WS_PART}")
    a("s_lshl1_add_u32 s72, s56, s59")
    a("s_mul_i32 s70, s72, 7")
    a("s_add_u32 s70, s70, s3")
    a("s_lshl_b32 s71, s70, 10")
    a(f"s_add_u32 s71, s71, {WS_H}")
    a("s_lshl_b32 s70, s70, 16")
    a("s_bfe_u32 s74, s2, 0x40003")
    a("s_lshl_b32 s52, s74, 7")
    a("s_add_u32 s70, s70, s52")
    a("s_lshl_b32 s72, s72, 7")
    a("s_lshl2_add_u32 s74, s74, s3")
    a("s_lshl_b32 s74, s74, 13")
    a("s_add_u32 s72, s72, s74")
    a(f"s_add_u32 s72, s72, {WS_P}")
    return I(r)

def tags():
    r = ["s_waitcnt lgkmcnt(0)"]
    for j in range(4): r.append(f"s_add_u32 s{44+j}, s{44+j}, {CJ[j]}")
    for j in range(4): r.append(f"s_and_b32 s{48+j}, s{44+j}, 0x3ff")
    return I(r)

def xreads():
    r = []
    for kb in range(8):
        if kb == 0:
            r.append("ds_read_b128 v[64:67], v7")
        else:
            r.append(f"v_xor_b32 v18, {kb << 6}, v7")
            r.append(f"ds_read_b128 v[{64+4*kb}:{67+4*kb}], v18")
    return I(r)

def publish(voff, sbase, pol):
    r = ["s_nop 7"]
    for j in range(4): r.append(f"v_add_u32 v{40+j}, 0x200, v{40+j}")
    for j in range(4): r.append(f"v_bfi_b32 v{40+j}, v15, s{44+j}, v{40+j}")
    r.append("s_mov_b32 exec_hi, 0")
    r.append(f"buffer_store_dwordx4 v[40:43], v{voff}, s[28:31], s{sbase} offen{pol}")
    r.append("s_mov_b32 exec_hi, -1")
    return I(r)

def wd_loads(NT, skip):
    r = ["s_cmp_eq_u32 s3, 7", f"s_cbranch_scc1 {skip}", "s_lshl_b32 m0, s3, 12"]
    for i, rows in enumerate([0, 16, 4, 20]):
        r.append(f"s_add_u32 s68, s70, {rows*2048 - i*1024}")
        r.append(f"buffer_load_dwordx4 v8, s[24:27], s68 offen offset:{i*1024}{NT} lds")
    return I(r)

def check8(ok):
    r = ["s_waitcnt vmcnt(0)"]
    for j in range(8): r.append(f"v_xor_b32 v{44+j}, s{48+(j&3)}, v{44+j}")
    r += ["v_or3_b32 v52, v44, v45, v46", "v_or3_b32 v53, v47, v48, v49", "v_or3_b32 v52, v52, v50, v51",
          "v_and_or_b32 v52, v52, v15, 0", "v_and_or_b32 v52, v53, v15, v52",
          "v_cmp_ne_u32 vcc, 0, v52", f"s_cbranch_vccz {ok}"]
    return I(r)

def redscatter(b):
    return I(["s_nop 1", f"v_permlane32_swap_b32 v{b}, v{b+2}", f"v_permlane32_swap_b32 v{b+1}, v{b+3}",
              f"v_add_f32 v{b}, v{b}, v{b+2}", f"v_add_f32 v{b+1}, v{b+1}, v{b+3}", "s_nop 1",
              f"v_permlane16_swap_b32 v{b}, v{b+1}", f"v_add_f32 v{b}, v{b}, v{b+1}"])

def redscatter2(b, c):
    r = []
    for x in (b, c):
        r += [f"v_permlane32_swap_b32 v{x}, v{x+2}", f"v_permlane32_swap_b32 v{x+1}, v{x+3}"]
    for x in (b, c):
        r += [f"v_add_f32 v{x}, v{x}, v{x+2}", f"v_add_f32 v{x+1}, v{x+1}, v{x+3}"]
    r += ["s_nop 0", f"v_permlane16_swap_b32 v{b}, v{b+1}", f"v_permlane16_swap_b32 v{c}, v{c+1}",
          f"v_add_f32 v{b}, v{b}, v{b+1}", f"v_add_f32 v{c}, v{c}, v{c+1}"]
    return I(r)

if __name__ == "__main__":
    out = sys.argv[1]
    kw = {}
    for arg in sys.argv[2:]:
        k, v = arg.split("=")
        kw[k] = int(v)
    open(out, "w").write(gen(**kw))
```

```python
import sys

KN = "standalone__moe_arch_mod__decode_kernel"
HEADER = """; Kernarg layout for this problem (64 bytes, ptrs only, base s[0:1]):
; @launch grid=(256,1,1) block=(512,1,1) lds={lds}
.amdgcn_target "amdgcn-amd-amdhsa--gfx950"
.text
.globl {kn}
.p2align 8
.type {kn},@function
{kn}:
"""
FOOTER = """
.section .rodata,"a"
.p2align 6
.amdhsa_kernel {kn}
  .amdhsa_next_free_vgpr {vgpr}
  .amdhsa_next_free_sgpr 96
  .amdhsa_accum_offset {vgpr}
  .amdhsa_group_segment_fixed_size 0
  .amdhsa_kernarg_size 64
  .amdhsa_user_sgpr_count 2
  .amdhsa_user_sgpr_kernarg_segment_ptr 1
  .amdhsa_system_sgpr_workgroup_id_x 1
  .amdhsa_float_denorm_mode_32 3
.end_amdhsa_kernel
"""

WS_RS   = 0x1000
WS_H    = 0x10000
WS_PART = 0x40000
WS_P    = 0x200000
WS_SIZE = 0x400000
L_X = 0x10000
L_H = 0x11000
L_HALF = 0x8000
CJ = [0x2B5, 0x13F, 0x3D1, 0x087]
POLL_LIMIT = 1 << 16
WB_EVERY = 31

def gen(stamps=False, nt=True, lds=98304, local_plain=True, prefetch=True, probe=-1, wb=31):
    global WB_EVERY
    WB_EVERY = wb
    if probe >= 0: stamps = True
    o = []
    def a(s): o.append("    " + s)
    def L(s): o.append(s + ":")
    NT = " nt" if nt else ""
    LP = "" if local_plain else " sc1"
    def stamp(k):
        if stamps: a(f"s_memrealtime s[{76+2*k}:{77+2*k}]")
    def srd(d, lo, size):
        a(f"s_mov_b32 s{d}, s{lo}"); a(f"s_mov_b32 s{d+1}, s{lo+1}")
        a(f"s_mov_b32 s{d+2}, {size}"); a(f"s_mov_b32 s{d+3}, 0x20000")
    def fallback(lbl, cnt):
        a(f"s_add_u32 s{cnt}, s{cnt}, 1")
        a(f"s_and_b32 s74, s{cnt}, {WB_EVERY}")
        a(f"s_cbranch_scc1 {lbl}")
        a("buffer_wbl2 sc1")
        a(f"s_cmp_lt_u32 s{cnt}, {POLL_LIMIT}")
        a(f"s_cbranch_scc1 {lbl}")
        a("s_endpgm")

    END = "L_stamp" if stamps else "L_end"
    if stamps:
        for j in range(76, 90): a(f"s_mov_b32 s{j}, 0")
    stamp(0)
    a("s_load_dwordx16 s[4:19], s[0:1], 0")
    a("s_cmp_ge_u32 s2, 256")
    a("s_cbranch_scc1 L_end")
    a("v_lshrrev_b32 v2, 6, v0")
    a("v_and_b32 v1, 63, v0")
    a("v_readfirstlane_b32 s3, v2")
    a("s_and_b32 s56, s2, 7")
    a("s_bfe_u32 s57, s2, 0x20003")
    a("s_bfe_u32 s58, s2, 0x20005")
    a("s_lshr_b32 s59, s2, 7")
    a("s_and_b32 s60, s2, 1")
    a("s_lshl1_add_u32 s60, s58, s60")
    a("s_cmp_eq_u32 s60, 7")
    a("s_cselect_b32 s60, 0, s60")
    a("s_mul_i32 s61, s56, 7")
    a("s_add_u32 s61, s61, s60")
    a("s_lshl_b32 s62, s61, 7")
    a("s_lshl3_add_u32 s63, s57, s3")
    a(f"s_mul_i32 s63, s63, {32*7168}")
    a("s_add_u32 s62, s62, s63")
    a("v_lshrrev_b32 v3, 5, v0")
    a("v_and_b32 v4, 31, v0")
    a("v_lshlrev_b32 v5, 2, v3")
    a("v_xor_b32 v4, v4, v5")
    a("v_lshlrev_b32 v3, 11, v3")
    a("v_lshl_add_u32 v3, v4, 4, v3")
    a("s_lshl_b32 s64, s57, 9")
    a("s_lshl_b32 s65, s3, 10")
    a(f"s_add_u32 s65, s65, {L_X}")
    a("s_cmp_eq_u32 s58, 3")
    a("s_cbranch_scc1 L_half")

    a("v_lshrrev_b32 v4, 4, v1")
    a("v_and_b32 v5, 15, v1")
    a("v_lshlrev_b32 v6, 1, v4")
    a("v_xor_b32 v5, v5, v6")
    a("v_mul_u32_u24 v4, 7168, v4")
    a("v_lshl_add_u32 v4, v5, 4, v4")
    a("v_xor_b32 v5, 0x80, v4")
    a("s_mov_b32 s66, 56320")
    a("s_lshl_b32 s67, s3, 13")
    a("s_cmp_eq_u32 s59, 0")
    a("s_waitcnt lgkmcnt(0)")
    a("s_cselect_b32 s20, s8, s10"); a("s_cselect_b32 s21, s9, s11")
    a("s_mov_b32 s22, 7340032"); a("s_mov_b32 s23, 0x20000")
    srd(32, 4, 16384)
    stamp(1)
    a("s_cmp_ge_u32 s3, 4")
    a("s_cbranch_scc1 L_f_nox")
    a("s_mov_b32 m0, s65")
    a("s_nop 0")
    a("buffer_load_dwordx4 v3, s[32:35], s64 offen lds")
    L("L_f_nox")
    a("s_mov_b32 m0, s67")
    a(f"s_add_u32 s68, s62, {4*7168}")
    for i in range(4):
        a(f"buffer_load_dwordx4 v{4+(i&1)}, s[20:23], s62 offen offset:{i*1024}{NT} lds")
        if i < 3: a("s_add_u32 s62, s62, s66")
    a("s_addk_i32 m0, 0x1000")
    a("s_load_dwordx4 s[44:47], s[18:19], 0")
    for i in range(4):
        a(f"buffer_load_dwordx4 v{4+(i&1)}, s[20:23], s68 offen offset:{i*1024}{NT} lds")
        if i < 3: a("s_add_u32 s68, s68, s66")
    a("v_lshrrev_b32 v6, 2, v1")
    a("v_and_b32 v7, 7, v6")
    a("v_xor_b32 v7, s3, v7")
    a("v_lshlrev_b32 v6, 8, v6")
    a("v_lshl_add_u32 v6, v7, 5, v6")
    a("v_and_b32 v7, 3, v1")
    a("v_lshl_add_u32 v6, v7, 3, v6")
    o.extend(common_setup())
    a("s_cmp_ge_u32 s3, 4")
    a("s_cbranch_scc1 L_f_s0")
    a("s_waitcnt vmcnt(0)")
    L("L_f_s0")
    o.extend(tags())
    a("s_barrier")
    o.extend(xreads())
    def trreads(kbs, stride, half, base=0, addr=6):
        for n, kb in enumerate(kbs):
            a(f"ds_read_b64_tr_b16 v[{96+4*n}:{97+4*n}], v{addr} offset:{base + kb*stride}")
            a(f"ds_read_b64_tr_b16 v[{98+4*n}:{99+4*n}], v{addr} offset:{base + kb*stride + half}")
    def mfmas(kbs, first):
        nk = len(kbs)
        for n, kb in enumerate(kbs):
            a(f"s_waitcnt lgkmcnt({2*(nk-1-n)})")
            c = "0" if (first and n == 0) else "v[40:43]"
            a(f"v_mfma_f32_16x16x32_bf16 v[40:43], v[{64+4*kb}:{67+4*kb}], v[{96+4*n}:{99+4*n}], {c}")
    trreads([0, 1, 2, 3], 8192, 4096)
    mfmas([0, 1, 2, 3], True)
    a("s_cmp_ge_u32 s3, 6")
    a("s_cbranch_scc1 L_f_s1")
    a("s_waitcnt vmcnt(0)")
    L("L_f_s1")
    a("s_barrier")
    trreads([4, 5], 8192, 4096)
    mfmas([4, 5], False)
    a("s_waitcnt vmcnt(0)")
    a("s_barrier")
    stamp(2)
    trreads([6, 7], 8192, 4096)
    mfmas([6, 7], False)
    o.extend(publish(10, 69, LP))
    a("s_barrier")
    o.extend(wd_loads(NT, "L_p2"))

    L("L_p2")
    stamp(3)
    a("s_cmp_eq_u32 s3, 7")
    a("s_cbranch_scc1 L_final")
    a("buffer_load_dwordx4 v[44:47], v12, s[28:31], s71 offen sc1")
    a("s_waitcnt vmcnt(1)")
    a("s_barrier")
    a("s_cmp_ge_u32 s3, 4")
    a("s_cbranch_scc1 L_h_chk")
    trreads(range(7), 4096, 2048, addr=9)
    a("s_branch L_h_chk")
    L("L_h_poll")
    a("buffer_load_dwordx4 v[44:47], v12, s[28:31], s71 offen sc1")
    L("L_h_chk")
    a("s_waitcnt vmcnt(0)")
    for j in range(4): a(f"v_xor_b32 v{48+j}, s{44+j}, v{44+j}")
    a("v_or3_b32 v48, v48, v49, v50")
    a("v_or_b32 v48, v48, v51")
    a("v_and_b32 v48, 0xffff, v48")
    a("v_cmp_ne_u32 vcc, 0, v48")
    a("s_cbranch_vccz L_h_ok")
    fallback("L_h_poll", 75)
    L("L_h_ok")
    a("v_perm_b32 v48, v45, v44, s73")
    a("v_perm_b32 v49, v47, v46, s73")
    a("ds_write_b64 v13, v[48:49]")
    a("s_waitcnt lgkmcnt(0)")
    a("s_barrier")
    stamp(4)
    a("s_cmp_ge_u32 s3, 4")
    a(f"s_cbranch_scc1 {END}")
    for kb in range(7):
        a(f"ds_read_b128 v[{64+4*kb}:{67+4*kb}], v14 offset:{kb*512}")
    for kb in range(7):
        a(f"s_waitcnt lgkmcnt({6-kb})")
        c = "0" if kb == 0 else "v[40:43]"
        a(f"v_mfma_f32_16x16x32_bf16 v[40:43], v[{64+4*kb}:{67+4*kb}], v[{96+4*kb}:{99+4*kb}], {c}")
    o.extend(publish(11, 72, " sc1"))
    stamp(5)
    a(f"s_branch {END}")

    L("L_final")
    a("s_lshl1_add_u32 s60, s56, s59")
    a("s_bfe_u32 s61, s2, 0x40003")
    a("s_bfe_u32 s62, s60, 0x10001")
    a("v_lshrrev_b32 v20, 4, v1")
    a("s_lshl_b32 s62, s62, 2")
    a("v_add_u32 v20, s62, v20")
    a("s_lshl_b32 s63, s56, 7")
    a(f"s_add_u32 s63, s63, {WS_RS}")
    a("v_lshlrev_b32 v21, 4, v20")
    a("buffer_load_dwordx4 v[24:27], v21, s[28:31], s63 offen sc1")
    a("s_lshr_b32 s64, s60, 2")
    a("s_lshl2_add_u32 s64, s61, s64")
    a("s_and_b32 s65, s60, 1")
    a("s_lshl1_add_u32 s64, s64, s65")
    a("s_lshl_b32 s64, s64, 4")
    a("v_and_b32 v22, 7, v1")
    a("v_lshlrev_b32 v22, 1, v22")
    a("v_lshl_add_u32 v22, v20, 11, v22")
    a("buffer_load_ushort v23, v22, s[32:35], s64 offen")
    srd(36, 14, 16384)
    a("s_lshl_b32 s65, s61, 15")
    a("s_lshl_b32 s66, s60, 11")
    a("s_add_u32 s65, s65, s66")
    a(f"s_add_u32 s65, s65, {WS_P}")
    a("s_barrier")
    a("s_branch L_rs_chk")
    L("L_rs_poll")
    a("buffer_load_dwordx4 v[24:27], v21, s[28:31], s63 offen sc1")
    L("L_rs_chk")
    a("s_waitcnt vmcnt(0)")
    for j in range(4): a(f"v_xor_b32 v{28+j}, s{44+j}, v{24+j}")
    a("v_and_b32 v28, 0xffff, v28")
    a("v_or3_b32 v28, v28, v29, v30")
    a("v_or_b32 v28, v28, v31")
    a("v_cmp_ne_u32 vcc, 0, v28")
    a("s_cbranch_vccz L_rs_ok")
    fallback("L_rs_poll", 75)
    L("L_rs_ok")
    a("v_and_b32 v24, 0xffff0000, v24")
    a("v_lshlrev_b32 v23, 16, v23")
    a("s_barrier")
    L("L_y_poll")
    a("buffer_load_dwordx4 v[44:47], v12, s[28:31], s65 offen sc1")
    a("buffer_load_dwordx4 v[48:51], v12, s[28:31], s65 offen offset:1024 sc1")
    o.extend(check8("L_y_ok"))
    fallback("L_y_poll", 75)
    L("L_y_ok")
    stamp(5)
    for j in range(4): a(f"v_add_f32 v{44+j}, v{44+j}, v{48+j}")
    o.extend(redscatter(44))
    a("s_nop 1")
    a("v_add_f32_dpp v44, v44, v44 row_ror:8 row_mask:0xf bank_mask:0xf")
    a("v_cvt_pk_bf16_f32 v44, v44, v44")
    a("v_and_b32 v44, 0xffff0000, v44")
    a("v_mul_f32 v44, v44, v24")
    a("v_cvt_pk_bf16_f32 v44, v44, v44")
    a("v_and_b32 v44, 0xffff0000, v44")
    a("v_fma_f32 v44, v23, 0, v44")
    a("v_add_f32 v44, v23, v44")
    a("v_cvt_pk_bf16_f32 v44, v44, v44")
    a("s_mov_b32 exec_lo, 0x00ff00ff")
    a("s_mov_b32 exec_hi, 0x00ff00ff")
    a("buffer_store_short v44, v22, s[36:39], s64 offen")
    stamp(6)
    a("s_cmp_lg_u32 s2, 0")
    a(f"s_cbranch_scc1 {END}")
    for j in range(4): a(f"v_mov_b32 v{28+j}, s{44+j}")
    a("v_mov_b32 v32, 0")
    a("s_mov_b64 exec, 1")
    a("buffer_store_dwordx4 v[28:31], v32, s[28:31], 0 offen")
    a(f"s_branch {END}")

    L("L_half")
    if prefetch:
        a("s_cmp_lg_u32 s3, 7")
        a("s_cbranch_scc1 L_nopf")
        a("s_getpc_b64 s[66:67]")
        L("L_pc")
        a(f"s_sub_u32 s66, s66, L_pc-{KN}")
        a("s_subb_u32 s67, s67, 0")
        a("v_lshlrev_b32 v7, 7, v1")
        a("v_min_u32 v7, L_end-" + KN + ", v7")
        a("global_load_dword v60, v7, s[66:67]")
        L("L_nopf")
    a("s_cmp_eq_u32 s59, 0")
    a("s_waitcnt lgkmcnt(0)")
    a("s_cselect_b32 s20, s8, s10"); a("s_cselect_b32 s21, s9, s11")
    a("s_mov_b32 s22, 7340032"); a("s_mov_b32 s23, 0x20000")
    srd(32, 4, 16384)
    stamp(1)
    a("s_load_dwordx4 s[44:47], s[18:19], 0")
    o.extend(common_setup())
    a("s_cmp_ge_u32 s3, 4")
    a("s_cbranch_scc1 L_h_nox")
    a("s_mov_b32 m0, s65")
    a("s_nop 0")
    a("buffer_load_dwordx4 v3, s[32:35], s64 offen lds")
    L("L_h_nox")
    a("s_movk_i32 s66, 7168")
    a("v_mad_u32_u24 v4, v16, s66, v17")
    a("s_lshl_b32 s67, s3, 12")
    a(f"s_add_u32 m0, s67, {L_HALF}")
    for i, rows in enumerate([0, 16, 4, 20]):
        a(f"s_add_u32 s68, s62, {rows*7168 - i*1024}")
        a(f"buffer_load_dwordx4 v4, s[20:23], s68 offen offset:{i*1024}{NT} lds")
    o.extend(wd_loads(NT, "L_h_wd"))
    L("L_h_wd")
    a("s_lshl2_add_u32 s61, s59, s57")
    a("s_cmp_lg_u32 s61, 7")
    a("s_cbranch_scc1 L_h_nor")
    srd(40, 6, 2048)
    a("s_lshl_b32 s66, s3, 11")
    a("buffer_load_dwordx4 v[20:23], v12, s[32:35], s66 offen")
    a("buffer_load_dwordx4 v[24:27], v12, s[32:35], s66 offen offset:1024")
    a("buffer_load_dwordx4 v[28:31], v12, s[40:43], 0 offen")
    a("buffer_load_dwordx4 v[32:35], v12, s[40:43], 0 offen offset:1024")
    L("L_h_nor")
    o.extend(tags())
    a("s_waitcnt vmcnt(0)")
    a("s_barrier")
    stamp(2)
    a("s_cmp_ge_u32 s3, 4")
    a("s_cbranch_scc1 L_h_nop1")
    o.extend(xreads())
    trreads([0, 1, 2, 3], 4096, 2048, base=L_HALF, addr=9)
    mfmas([0, 1, 2, 3], True)
    trreads([4, 5, 6, 7], 4096, 2048, base=L_HALF, addr=9)
    mfmas([4, 5, 6, 7], False)
    o.extend(publish(10, 69, LP))
    L("L_h_nop1")
    a("s_cmp_eq_u32 s61, 7")
    a("s_cbranch_scc1 L_router")
    a("s_lshl3_add_u32 s62, s61, s3")
    a("s_mul_i32 s63, s56, 56")
    a("s_add_u32 s62, s62, s63")
    a("s_lshl_b32 s63, s62, 11")
    a(f"s_add_u32 s63, s63, {WS_PART}")
    a("s_lshl_b32 s62, s62, 8")
    a(f"s_add_u32 s62, s62, {WS_H}")
    a("v_and_b32 v20, 3, v1")
    a("v_mov_b32 v21, s44")
    for j in range(1, 4):
        a(f"v_mov_b32 v22, s{44+j}")
        a(f"v_cmp_eq_u32 vcc, {j}, v20")
        a("s_nop 1")
        a("v_cndmask_b32 v21, v21, v22, vcc")
    a("v_and_b32 v21, 0xffff, v21")
    a("v_lshrrev_b32 v22, 4, v1")
    a("v_bfe_u32 v23, v1, 3, 1")
    a("v_lshl_add_u32 v22, v23, 2, v22")
    a("v_and_b32 v23, 7, v1")
    a("v_lshlrev_b32 v23, 2, v23")
    a("v_lshl_add_u32 v22, v22, 5, v23")
    L("L_r_poll")
    a("buffer_load_dwordx4 v[44:47], v12, s[28:31], s63 offen sc1")
    a("buffer_load_dwordx4 v[48:51], v12, s[28:31], s63 offen offset:1024 sc1")
    o.extend(check8("L_r_ok"))
    fallback("L_r_poll", 75)
    L("L_r_ok")
    o.extend(redscatter2(44, 48))
    a("v_cvt_pk_bf16_f32 v44, v44, v48")
    a("v_lshlrev_b32 v45, 16, v44")
    a("v_and_b32 v44, 0xffff0000, v44")
    a("v_mul_f32 v46, 0xbfb8aa3b, v45")
    a("v_exp_f32 v46, v46")
    a("s_nop 0")
    a("v_add_f32 v46, 1.0, v46")
    a("v_rcp_f32 v46, v46")
    a("s_nop 0")
    a("v_mul_f32 v45, v45, v46")
    a("v_cvt_pk_bf16_f32 v45, v45, v45")
    a("v_and_b32 v45, 0xffff0000, v45")
    a("v_mul_f32 v45, v45, v44")
    a("v_cvt_pk_bf16_f32 v45, v45, v45")
    a("v_lshl_or_b32 v45, v45, 16, v21")
    a(f"buffer_store_dword v45, v22, s[28:31], s62 offen{LP}")
    a("s_branch L_p2")
    L("L_router")
    a("v_mov_b32 v36, 0")
    for j in range(8):
        a(f"v_dot2_f32_bf16 v36, v{20+j}, v{28+j}, v36")
    for ctl in ["quad_perm:[1,0,3,2]", "quad_perm:[2,3,0,1]", "row_half_mirror", "row_mirror"]:
        a("s_nop 2")
        a(f"v_add_f32_dpp v36, v36, v36 {ctl} row_mask:0xf bank_mask:0xf")
    a("v_mov_b32 v37, v36")
    a("s_nop 1")
    a("v_permlane16_swap_b32 v36, v37")
    a("v_add_f32 v36, v36, v37")
    a("v_mov_b32 v37, v36")
    a("s_nop 1")
    a("v_permlane32_swap_b32 v36, v37")
    a("v_add_f32 v36, v36, v37")
    a("v_cvt_pk_bf16_f32 v36, v36, v36")
    a("v_and_b32 v36, 0xffff0000, v36")
    a("v_mul_f32 v36, 0xbfb8aa3b, v36")
    a("v_exp_f32 v36, v36")
    a("s_nop 0")
    a("v_add_f32 v36, 1.0, v36")
    a("v_rcp_f32 v36, v36")
    a("s_and_b32 s62, s44, 0xffff")
    a("v_cvt_pk_bf16_f32 v36, v36, v36")
    a("v_lshl_or_b32 v36, v36, 16, s62")
    for j in range(1, 4): a(f"v_mov_b32 v{36+j}, s{44+j}")
    a("s_lshl_b32 s62, s56, 7")
    a("s_lshl4_add_u32 s62, s3, s62")
    a(f"s_add_u32 s62, s62, {WS_RS}")
    a("v_mov_b32 v20, 0")
    a("s_mov_b64 exec, 1")
    a("buffer_store_dwordx4 v[36:39], v20, s[28:31], s62 offen sc1")
    a("s_mov_b64 exec, -1")
    a("s_branch L_p2")

    if probe >= 0:
        L("L_stamp")
        a("s_waitcnt lgkmcnt(0)")
        a(f"s_sub_u32 s90, s{76+2*probe}, s76")
        a(f"s_cmp_eq_u32 s{76+2*probe}, 0")
        a("s_cselect_b32 s90, 0, s90")
        a("s_lshl_b32 s90, s90, 2")
        a("s_add_u32 s90, s90, 3000")
        a("s_min_u32 s90, s90, 100000")
        L("L_spin")
        a("s_memrealtime s[92:93]")
        a("s_waitcnt lgkmcnt(0)")
        a("s_sub_u32 s92, s92, s76")
        a("s_cmp_lt_u32 s92, s90")
        a("s_cbranch_scc1 L_spin")
    elif stamps:
        L("L_stamp")
        a("s_mov_b64 exec, -1")
        a("s_waitcnt lgkmcnt(0)")
        a("s_add_u32 s92, s18, 0x8000000"); a("s_addc_u32 s93, s19, 0")
        a("s_mov_b32 s94, 0x100000"); a("s_mov_b32 s95, 0x20000")
        a("s_lshl3_add_u32 s90, s2, s3"); a("s_lshl_b32 s90, s90, 6")
        for j in range(14): a(f"v_mov_b32 v{100+j}, s{76+j}")
        a("v_mov_b32 v114, 0x54414D50"); a("v_mov_b32 v115, 0x53"); a("v_mov_b32 v116, 0")
        a("s_mov_b64 exec, 1")
        for j in range(4): a(f"buffer_store_dwordx4 v[{100+4*j}:{103+4*j}], v116, s[92:95], s90 offen offset:{16*j}")
    L("L_end")
    a("s_endpgm")
    return HEADER.format(kn=KN, lds=lds) + "\n".join(o) + FOOTER.format(kn=KN, vgpr=128)

def I(lines): return ["    " + x if not x.endswith(":") else x for x in lines]

def common_setup():
    r = []
    a = r.append
    a("s_mov_b32 s24, s12"); a("s_mov_b32 s25, s13"); a("s_mov_b32 s26, 7340032"); a("s_mov_b32 s27, 0x20000")
    a("s_mov_b32 s28, s18"); a("s_mov_b32 s29, s19"); a(f"s_mov_b32 s30, {WS_SIZE}"); a("s_mov_b32 s31, 0x20000")
    a("s_mov_b32 s75, 0")
    a("s_mov_b32 s73, 0x07060302")
    a("v_mov_b32 v15, 0x3ff")
    a("v_lshlrev_b32 v12, 4, v1")
    a("v_bfe_u32 v16, v1, 3, 2")
    a("v_lshrrev_b32 v17, 5, v1")
    a("v_lshl_add_u32 v16, v17, 3, v16")
    a("v_lshrrev_b32 v17, 4, v1")
    a("v_lshlrev_b32 v17, 1, v17")
    a("v_xor_b32 v17, v17, v1")
    a("v_and_b32 v17, 7, v17")
    a("v_lshlrev_b32 v17, 4, v17")
    a("v_lshl_add_u32 v8, v16, 11, v17")
    a("v_bfe_u32 v9, v1, 3, 2")
    a("v_xor_b32 v9, s3, v9")
    a("v_and_b32 v9, 3, v9")
    a("v_lshlrev_b32 v9, 5, v9")
    a("v_lshrrev_b32 v18, 2, v1")
    a("v_lshl_add_u32 v9, v18, 7, v9")
    a("v_and_b32 v18, 3, v1")
    a("v_lshl_add_u32 v9, v18, 3, v9")
    a("v_and_b32 v18, 7, v1")
    a("v_lshlrev_b32 v18, 4, v18")
    a("v_bfe_u32 v10, v1, 3, 1")
    a("v_lshl_add_u32 v10, v10, 11, v18")
    a("v_lshrrev_b32 v11, 4, v1")
    a("v_lshl_add_u32 v10, v11, 7, v10")
    a("v_lshrrev_b32 v11, 3, v1")
    a("v_lshl_add_u32 v11, v11, 11, v18")
    a("v_and_b32 v7, 7, v1")
    a("v_mul_u32_u24 v7, 576, v7")
    a("v_lshrrev_b32 v19, 4, v1")
    a("v_lshl_add_u32 v7, v19, 4, v7")
    a(f"v_add_u32 v7, {L_X}, v7")
    a("v_lshlrev_b32 v13, 3, v0")
    a(f"v_add_u32 v13, {L_H}, v13")
    a("v_lshl_add_u32 v14, v19, 7, v18")
    a(f"v_add_u32 v14, {L_H}, v14")
    a("s_lshl2_add_u32 s69, s61, s3")
    a("s_lshl_b32 s69, s69, 12")
    a("s_lshl2_add_u32 s70, s59, s57")
    a("s_lshl_b32 s70, s70, 8")
    a("s_add_u32 s69, s69, s70")
    a(f"s_add_u32 s69, s69, {WS_PART}")
    a("s_lshl1_add_u32 s72, s56, s59")
    a("s_mul_i32 s70, s72, 7")
    a("s_add_u32 s70, s70, s3")
    a("s_lshl_b32 s71, s70, 10")
    a(f"s_add_u32 s71, s71, {WS_H}")
    a("s_lshl_b32 s70, s70, 16")
    a("s_bfe_u32 s74, s2, 0x40003")
    a("s_lshl_b32 s52, s74, 7")
    a("s_add_u32 s70, s70, s52")
    a("s_lshl_b32 s72, s72, 7")
    a("s_lshl2_add_u32 s74, s74, s3")
    a("s_lshl_b32 s74, s74, 13")
    a("s_add_u32 s72, s72, s74")
    a(f"s_add_u32 s72, s72, {WS_P}")
    return I(r)

def tags():
    r = ["s_waitcnt lgkmcnt(0)"]
    for j in range(4): r.append(f"s_add_u32 s{44+j}, s{44+j}, {CJ[j]}")
    for j in range(4): r.append(f"s_and_b32 s{48+j}, s{44+j}, 0x3ff")
    return I(r)

def xreads():
    r = []
    for kb in range(8):
        if kb == 0:
            r.append("ds_read_b128 v[64:67], v7")
        else:
            r.append(f"v_xor_b32 v18, {kb << 6}, v7")
            r.append(f"ds_read_b128 v[{64+4*kb}:{67+4*kb}], v18")
    return I(r)

def publish(voff, sbase, pol):
    r = ["s_nop 7"]
    for j in range(4): r.append(f"v_add_u32 v{40+j}, 0x200, v{40+j}")
    for j in range(4): r.append(f"v_bfi_b32 v{40+j}, v15, s{44+j}, v{40+j}")
    r.append("s_mov_b32 exec_hi, 0")
    r.append(f"buffer_store_dwordx4 v[40:43], v{voff}, s[28:31], s{sbase} offen{pol}")
    r.append("s_mov_b32 exec_hi, -1")
    return I(r)

def wd_loads(NT, skip):
    r = ["s_cmp_eq_u32 s3, 7", f"s_cbranch_scc1 {skip}", "s_lshl_b32 m0, s3, 12"]
    for i, rows in enumerate([0, 16, 4, 20]):
        r.append(f"s_add_u32 s68, s70, {rows*2048 - i*1024}")
        r.append(f"buffer_load_dwordx4 v8, s[24:27], s68 offen offset:{i*1024}{NT} lds")
    return I(r)

def check8(ok):
    r = ["s_waitcnt vmcnt(0)"]
    for j in range(8): r.append(f"v_xor_b32 v{44+j}, s{48+(j&3)}, v{44+j}")
    r += ["v_or3_b32 v52, v44, v45, v46", "v_or3_b32 v53, v47, v48, v49", "v_or3_b32 v52, v52, v50, v51",
          "v_and_or_b32 v52, v52, v15, 0", "v_and_or_b32 v52, v53, v15, v52",
          "v_cmp_ne_u32 vcc, 0, v52", f"s_cbranch_vccz {ok}"]
    return I(r)

def redscatter(b):
    return I(["s_nop 1", f"v_permlane32_swap_b32 v{b}, v{b+2}", f"v_permlane32_swap_b32 v{b+1}, v{b+3}",
              f"v_add_f32 v{b}, v{b}, v{b+2}", f"v_add_f32 v{b+1}, v{b+1}, v{b+3}", "s_nop 1",
              f"v_permlane16_swap_b32 v{b}, v{b+1}", f"v_add_f32 v{b}, v{b}, v{b+1}"])

def redscatter2(b, c):
    r = []
    for x in (b, c):
        r += [f"v_permlane32_swap_b32 v{x}, v{x+2}", f"v_permlane32_swap_b32 v{x+1}, v{x+3}"]
    for x in (b, c):
        r += [f"v_add_f32 v{x}, v{x}, v{x+2}", f"v_add_f32 v{x+1}, v{x+1}, v{x+3}"]
    r += ["s_nop 0", f"v_permlane16_swap_b32 v{b}, v{b+1}", f"v_permlane16_swap_b32 v{c}, v{c+1}",
          f"v_add_f32 v{b}, v{b}, v{b+1}", f"v_add_f32 v{c}, v{c}, v{c+1}"]
    return I(r)

if __name__ == "__main__":
    out = sys.argv[1]
    kw = {}
    for arg in sys.argv[2:]:
        k, v = arg.split("=")
        kw[k] = int(v)
    open(out, "w").write(gen(**kw))
```

```python
import sys

KN = "standalone__moe_arch_mod__decode_kernel"
HEADER = """; Kernarg layout for this problem (64 bytes, ptrs only, base s[0:1]):
; @launch grid=(256,1,1) block=(512,1,1) lds={lds}
.amdgcn_target "amdgcn-amd-amdhsa--gfx950"
.text
.globl {kn}
.p2align 8
.type {kn},@function
{kn}:
"""
FOOTER = """
.section .rodata,"a"
.p2align 6
.amdhsa_kernel {kn}
  .amdhsa_next_free_vgpr {vgpr}
  .amdhsa_next_free_sgpr 96
  .amdhsa_accum_offset {vgpr}
  .amdhsa_group_segment_fixed_size 0
  .amdhsa_kernarg_size 64
  .amdhsa_user_sgpr_count 2
  .amdhsa_user_sgpr_kernarg_segment_ptr 1
  .amdhsa_system_sgpr_workgroup_id_x 1
  .amdhsa_float_denorm_mode_32 3
.end_amdhsa_kernel
"""

WS_RS   = 0x1000
WS_H    = 0x10000
WS_PART = 0x40000
WS_P    = 0x200000
WS_SIZE = 0x400000
L_X = 0x10000
L_H = 0x11000
L_HALF = 0x8000
CJ = [0x2B5, 0x13F, 0x3D1, 0x087]
POLL_LIMIT = 1 << 16
WB_EVERY = 31

def gen(stamps=False, nt=True, lds=98304, local_plain=True, prefetch=True, probe=-1, wb=31, prole=0):
    global WB_EVERY
    WB_EVERY = wb
    if probe >= 0: stamps = True
    o = []
    def a(s): o.append("    " + s)
    def L(s): o.append(s + ":")
    NT = " nt" if nt else ""
    LP = "" if local_plain else " sc1"
    def stamp(k):
        if stamps: a(f"s_memrealtime s[{76+2*k}:{77+2*k}]")
    def srd(d, lo, size):
        a(f"s_mov_b32 s{d}, s{lo}"); a(f"s_mov_b32 s{d+1}, s{lo+1}")
        a(f"s_mov_b32 s{d+2}, {size}"); a(f"s_mov_b32 s{d+3}, 0x20000")
    def fallback(lbl, cnt):
        a(f"s_add_u32 s{cnt}, s{cnt}, 1")
        a(f"s_and_b32 s74, s{cnt}, {WB_EVERY}")
        a(f"s_cbranch_scc1 {lbl}")
        a("buffer_wbl2 sc1")
        a(f"s_cmp_lt_u32 s{cnt}, {POLL_LIMIT}")
        a(f"s_cbranch_scc1 {lbl}")
        a("s_endpgm")

    END = "L_stamp" if stamps else "L_end"
    if stamps:
        for j in range(76, 90): a(f"s_mov_b32 s{j}, 0")
    stamp(0)
    a("s_load_dwordx16 s[4:19], s[0:1], 0")
    a("s_cmp_ge_u32 s2, 256")
    a("s_cbranch_scc1 L_end")
    a("v_lshrrev_b32 v2, 6, v0")
    a("v_and_b32 v1, 63, v0")
    a("v_readfirstlane_b32 s3, v2")
    a("s_and_b32 s56, s2, 7")
    a("s_bfe_u32 s57, s2, 0x20003")
    a("s_bfe_u32 s58, s2, 0x20005")
    a("s_lshr_b32 s59, s2, 7")
    a("s_and_b32 s60, s2, 1")
    a("s_lshl1_add_u32 s60, s58, s60")
    a("s_cmp_eq_u32 s60, 7")
    a("s_cselect_b32 s60, 0, s60")
    a("s_mul_i32 s61, s56, 7")
    a("s_add_u32 s61, s61, s60")
    a("s_lshl_b32 s62, s61, 7")
    a("s_lshl3_add_u32 s63, s57, s3")
    a(f"s_mul_i32 s63, s63, {32*7168}")
    a("s_add_u32 s62, s62, s63")
    a("v_lshrrev_b32 v3, 5, v0")
    a("v_and_b32 v4, 31, v0")
    a("v_lshlrev_b32 v5, 2, v3")
    a("v_xor_b32 v4, v4, v5")
    a("v_lshlrev_b32 v3, 11, v3")
    a("v_lshl_add_u32 v3, v4, 4, v3")
    a("s_lshl_b32 s64, s57, 9")
    a("s_lshl_b32 s65, s3, 10")
    a(f"s_add_u32 s65, s65, {L_X}")
    a("s_cmp_eq_u32 s58, 3")
    a("s_cbranch_scc1 L_half")

    a("v_lshrrev_b32 v4, 4, v1")
    a("v_and_b32 v5, 15, v1")
    a("v_lshlrev_b32 v6, 1, v4")
    a("v_xor_b32 v5, v5, v6")
    a("v_mul_u32_u24 v4, 7168, v4")
    a("v_lshl_add_u32 v4, v5, 4, v4")
    a("v_xor_b32 v5, 0x80, v4")
    a("s_mov_b32 s66, 56320")
    a("s_lshl_b32 s67, s3, 13")
    a("s_cmp_eq_u32 s59, 0")
    a("s_waitcnt lgkmcnt(0)")
    a("s_cselect_b32 s20, s8, s10"); a("s_cselect_b32 s21, s9, s11")
    a("s_mov_b32 s22, 7340032"); a("s_mov_b32 s23, 0x20000")
    srd(32, 4, 16384)
    stamp(1)
    a("s_cmp_ge_u32 s3, 4")
    a("s_cbranch_scc1 L_f_nox")
    a("s_mov_b32 m0, s65")
    a("s_nop 0")
    a("buffer_load_dwordx4 v3, s[32:35], s64 offen lds")
    L("L_f_nox")
    a("s_mov_b32 m0, s67")
    a(f"s_add_u32 s68, s62, {4*7168}")
    for i in range(4):
        a(f"buffer_load_dwordx4 v{4+(i&1)}, s[20:23], s62 offen offset:{i*1024}{NT} lds")
        if i < 3: a("s_add_u32 s62, s62, s66")
    a("s_addk_i32 m0, 0x1000")
    a("s_load_dwordx4 s[44:47], s[18:19], 0")
    for i in range(4):
        a(f"buffer_load_dwordx4 v{4+(i&1)}, s[20:23], s68 offen offset:{i*1024}{NT} lds")
        if i < 3: a("s_add_u32 s68, s68, s66")
    a("v_lshrrev_b32 v6, 2, v1")
    a("v_and_b32 v7, 7, v6")
    a("v_xor_b32 v7, s3, v7")
    a("v_lshlrev_b32 v6, 8, v6")
    a("v_lshl_add_u32 v6, v7, 5, v6")
    a("v_and_b32 v7, 3, v1")
    a("v_lshl_add_u32 v6, v7, 3, v6")
    o.extend(common_setup())
    a("s_cmp_ge_u32 s3, 4")
    a("s_cbranch_scc1 L_f_s0")
    a("s_waitcnt vmcnt(0)")
    L("L_f_s0")
    o.extend(tags())
    a("s_barrier")
    o.extend(xreads())
    def trreads(kbs, stride, half, base=0, addr=6):
        for n, kb in enumerate(kbs):
            a(f"ds_read_b64_tr_b16 v[{96+4*n}:{97+4*n}], v{addr} offset:{base + kb*stride}")
            a(f"ds_read_b64_tr_b16 v[{98+4*n}:{99+4*n}], v{addr} offset:{base + kb*stride + half}")
    def mfmas(kbs, first):
        nk = len(kbs)
        for n, kb in enumerate(kbs):
            a(f"s_waitcnt lgkmcnt({2*(nk-1-n)})")
            c = "0" if (first and n == 0) else "v[40:43]"
            a(f"v_mfma_f32_16x16x32_bf16 v[40:43], v[{64+4*kb}:{67+4*kb}], v[{96+4*n}:{99+4*n}], {c}")
    trreads([0, 1, 2, 3], 8192, 4096)
    mfmas([0, 1, 2, 3], True)
    a("s_cmp_ge_u32 s3, 6")
    a("s_cbranch_scc1 L_f_s1")
    a("s_waitcnt vmcnt(0)")
    L("L_f_s1")
    a("s_barrier")
    trreads([4, 5], 8192, 4096)
    mfmas([4, 5], False)
    a("s_waitcnt vmcnt(0)")
    a("s_barrier")
    stamp(2)
    trreads([6, 7], 8192, 4096)
    mfmas([6, 7], False)
    o.extend(publish(10, 69, LP))
    a("s_barrier")
    o.extend(wd_loads(NT, "L_p2"))

    L("L_p2")
    stamp(3)
    a("s_cmp_eq_u32 s3, 7")
    a("s_cbranch_scc1 L_final")
    a("buffer_load_dwordx4 v[44:47], v12, s[28:31], s71 offen sc1")
    a("s_waitcnt vmcnt(1)")
    a("s_barrier")
    a("s_cmp_ge_u32 s3, 4")
    a("s_cbranch_scc1 L_h_chk")
    trreads(range(7), 4096, 2048, addr=9)
    a("s_branch L_h_chk")
    L("L_h_poll")
    a("buffer_load_dwordx4 v[44:47], v12, s[28:31], s71 offen sc1")
    L("L_h_chk")
    a("s_waitcnt vmcnt(0)")
    for j in range(4): a(f"v_xor_b32 v{48+j}, s{44+j}, v{44+j}")
    a("v_or3_b32 v48, v48, v49, v50")
    a("v_or_b32 v48, v48, v51")
    a("v_and_b32 v48, 0xffff, v48")
    a("v_cmp_ne_u32 vcc, 0, v48")
    a("s_cbranch_vccz L_h_ok")
    fallback("L_h_poll", 75)
    L("L_h_ok")
    a("v_perm_b32 v48, v45, v44, s73")
    a("v_perm_b32 v49, v47, v46, s73")
    a("ds_write_b64 v13, v[48:49]")
    a("s_waitcnt lgkmcnt(0)")
    a("s_barrier")
    stamp(4)
    a("s_cmp_ge_u32 s3, 4")
    a(f"s_cbranch_scc1 {END}")
    for kb in range(7):
        a(f"ds_read_b128 v[{64+4*kb}:{67+4*kb}], v14 offset:{kb*512}")
    for kb in range(7):
        a(f"s_waitcnt lgkmcnt({6-kb})")
        c = "0" if kb == 0 else "v[40:43]"
        a(f"v_mfma_f32_16x16x32_bf16 v[40:43], v[{64+4*kb}:{67+4*kb}], v[{96+4*kb}:{99+4*kb}], {c}")
    o.extend(publish(11, 72, " sc1"))
    stamp(5)
    a(f"s_branch {END}")

    L("L_final")
    a("s_lshl1_add_u32 s60, s56, s59")
    a("s_bfe_u32 s61, s2, 0x40003")
    a("s_bfe_u32 s62, s60, 0x10001")
    a("v_lshrrev_b32 v20, 4, v1")
    a("s_lshl_b32 s62, s62, 2")
    a("v_add_u32 v20, s62, v20")
    a("s_lshl_b32 s63, s56, 7")
    a(f"s_add_u32 s63, s63, {WS_RS}")
    a("v_lshlrev_b32 v21, 4, v20")
    a("buffer_load_dwordx4 v[24:27], v21, s[28:31], s63 offen sc1")
    a("s_lshr_b32 s64, s60, 2")
    a("s_lshl2_add_u32 s64, s61, s64")
    a("s_and_b32 s65, s60, 1")
    a("s_lshl1_add_u32 s64, s64, s65")
    a("s_lshl_b32 s64, s64, 4")
    a("v_and_b32 v22, 7, v1")
    a("v_lshlrev_b32 v22, 1, v22")
    a("v_lshl_add_u32 v22, v20, 11, v22")
    a("buffer_load_ushort v23, v22, s[32:35], s64 offen")
    srd(36, 14, 16384)
    a("s_lshl_b32 s65, s61, 15")
    a("s_lshl_b32 s66, s60, 11")
    a("s_add_u32 s65, s65, s66")
    a(f"s_add_u32 s65, s65, {WS_P}")
    a("s_barrier")
    a("s_branch L_rs_chk")
    L("L_rs_poll")
    a("buffer_load_dwordx4 v[24:27], v21, s[28:31], s63 offen sc1")
    L("L_rs_chk")
    a("s_waitcnt vmcnt(0)")
    for j in range(4): a(f"v_xor_b32 v{28+j}, s{44+j}, v{24+j}")
    a("v_and_b32 v28, 0xffff, v28")
    a("v_or3_b32 v28, v28, v29, v30")
    a("v_or_b32 v28, v28, v31")
    a("v_cmp_ne_u32 vcc, 0, v28")
    a("s_cbranch_vccz L_rs_ok")
    fallback("L_rs_poll", 75)
    L("L_rs_ok")
    a("v_and_b32 v24, 0xffff0000, v24")
    a("v_lshlrev_b32 v23, 16, v23")
    a("s_barrier")
    L("L_y_poll")
    a("buffer_load_dwordx4 v[44:47], v12, s[28:31], s65 offen sc1")
    a("buffer_load_dwordx4 v[48:51], v12, s[28:31], s65 offen offset:1024 sc1")
    o.extend(check8("L_y_ok"))
    fallback("L_y_poll", 75)
    L("L_y_ok")
    stamp(5)
    for j in range(4): a(f"v_add_f32 v{44+j}, v{44+j}, v{48+j}")
    o.extend(redscatter(44))
    a("s_nop 1")
    a("v_add_f32_dpp v44, v44, v44 row_ror:8 row_mask:0xf bank_mask:0xf")
    a("v_cvt_pk_bf16_f32 v44, v44, v44")
    a("v_and_b32 v44, 0xffff0000, v44")
    a("v_mul_f32 v44, v44, v24")
    a("v_cvt_pk_bf16_f32 v44, v44, v44")
    a("v_and_b32 v44, 0xffff0000, v44")
    a("v_fma_f32 v44, v23, 0, v44")
    a("v_add_f32 v44, v23, v44")
    a("v_cvt_pk_bf16_f32 v44, v44, v44")
    a("s_mov_b32 exec_lo, 0x00ff00ff")
    a("s_mov_b32 exec_hi, 0x00ff00ff")
    a("buffer_store_short v44, v22, s[36:39], s64 offen")
    stamp(6)
    a("s_cmp_lg_u32 s2, 0")
    a(f"s_cbranch_scc1 {END}")
    for j in range(4): a(f"v_mov_b32 v{28+j}, s{44+j}")
    a("v_mov_b32 v32, 0")
    a("s_mov_b64 exec, 1")
    a("buffer_store_dwordx4 v[28:31], v32, s[28:31], 0 offen")
    a(f"s_branch {END}")

    L("L_half")
    if prefetch:
        a("s_cmp_lg_u32 s3, 7")
        a("s_cbranch_scc1 L_nopf")
        a("s_getpc_b64 s[66:67]")
        L("L_pc")
        a(f"s_sub_u32 s66, s66, L_pc-{KN}")
        a("s_subb_u32 s67, s67, 0")
        a("v_lshlrev_b32 v7, 7, v1")
        a("v_min_u32 v7, L_end-" + KN + ", v7")
        a("global_load_dword v60, v7, s[66:67]")
        L("L_nopf")
    a("s_cmp_eq_u32 s59, 0")
    a("s_waitcnt lgkmcnt(0)")
    a("s_cselect_b32 s20, s8, s10"); a("s_cselect_b32 s21, s9, s11")
    a("s_mov_b32 s22, 7340032"); a("s_mov_b32 s23, 0x20000")
    srd(32, 4, 16384)
    stamp(1)
    a("s_load_dwordx4 s[44:47], s[18:19], 0")
    o.extend(common_setup())
    a("s_cmp_ge_u32 s3, 4")
    a("s_cbranch_scc1 L_h_nox")
    a("s_mov_b32 m0, s65")
    a("s_nop 0")
    a("buffer_load_dwordx4 v3, s[32:35], s64 offen lds")
    L("L_h_nox")
    a("s_movk_i32 s66, 7168")
    a("v_mad_u32_u24 v4, v16, s66, v17")
    a("s_lshl_b32 s67, s3, 12")
    a(f"s_add_u32 m0, s67, {L_HALF}")
    for i, rows in enumerate([0, 16, 4, 20]):
        a(f"s_add_u32 s68, s62, {rows*7168 - i*1024}")
        a(f"buffer_load_dwordx4 v4, s[20:23], s68 offen offset:{i*1024}{NT} lds")
    o.extend(wd_loads(NT, "L_h_wd"))
    L("L_h_wd")
    a("s_lshl2_add_u32 s61, s59, s57")
    a("s_cmp_lg_u32 s61, 7")
    a("s_cbranch_scc1 L_h_nor")
    srd(40, 6, 2048)
    a("s_lshl_b32 s66, s3, 11")
    a("buffer_load_dwordx4 v[20:23], v12, s[32:35], s66 offen")
    a("buffer_load_dwordx4 v[24:27], v12, s[32:35], s66 offen offset:1024")
    a("buffer_load_dwordx4 v[28:31], v12, s[40:43], 0 offen")
    a("buffer_load_dwordx4 v[32:35], v12, s[40:43], 0 offen offset:1024")
    L("L_h_nor")
    o.extend(tags())
    a("s_waitcnt vmcnt(0)")
    a("s_barrier")
    stamp(2)
    a("s_cmp_ge_u32 s3, 4")
    a("s_cbranch_scc1 L_h_nop1")
    o.extend(xreads())
    trreads([0, 1, 2, 3], 4096, 2048, base=L_HALF, addr=9)
    mfmas([0, 1, 2, 3], True)
    trreads([4, 5, 6, 7], 4096, 2048, base=L_HALF, addr=9)
    mfmas([4, 5, 6, 7], False)
    o.extend(publish(10, 69, LP))
    L("L_h_nop1")
    a("s_cmp_eq_u32 s61, 7")
    a("s_cbranch_scc1 L_router")
    a("s_lshl3_add_u32 s62, s61, s3")
    a("s_mul_i32 s63, s56, 56")
    a("s_add_u32 s62, s62, s63")
    a("s_lshl_b32 s63, s62, 11")
    a(f"s_add_u32 s63, s63, {WS_PART}")
    a("s_lshl_b32 s62, s62, 8")
    a(f"s_add_u32 s62, s62, {WS_H}")
    a("v_and_b32 v20, 3, v1")
    a("v_mov_b32 v21, s44")
    for j in range(1, 4):
        a(f"v_mov_b32 v22, s{44+j}")
        a(f"v_cmp_eq_u32 vcc, {j}, v20")
        a("s_nop 1")
        a("v_cndmask_b32 v21, v21, v22, vcc")
    a("v_and_b32 v21, 0xffff, v21")
    a("v_lshrrev_b32 v22, 4, v1")
    a("v_bfe_u32 v23, v1, 3, 1")
    a("v_lshl_add_u32 v22, v23, 2, v22")
    a("v_and_b32 v23, 7, v1")
    a("v_lshlrev_b32 v23, 2, v23")
    a("v_lshl_add_u32 v22, v22, 5, v23")
    L("L_r_poll")
    a("buffer_load_dwordx4 v[44:47], v12, s[28:31], s63 offen sc1")
    a("buffer_load_dwordx4 v[48:51], v12, s[28:31], s63 offen offset:1024 sc1")
    o.extend(check8("L_r_ok"))
    fallback("L_r_poll", 75)
    L("L_r_ok")
    o.extend(redscatter2(44, 48))
    a("v_cvt_pk_bf16_f32 v44, v44, v48")
    a("v_lshlrev_b32 v45, 16, v44")
    a("v_and_b32 v44, 0xffff0000, v44")
    a("v_mul_f32 v46, 0xbfb8aa3b, v45")
    a("v_exp_f32 v46, v46")
    a("s_nop 0")
    a("v_add_f32 v46, 1.0, v46")
    a("v_rcp_f32 v46, v46")
    a("s_nop 0")
    a("v_mul_f32 v45, v45, v46")
    a("v_cvt_pk_bf16_f32 v45, v45, v45")
    a("v_and_b32 v45, 0xffff0000, v45")
    a("v_mul_f32 v45, v45, v44")
    a("v_cvt_pk_bf16_f32 v45, v45, v45")
    a("v_lshl_or_b32 v45, v45, 16, v21")
    a(f"buffer_store_dword v45, v22, s[28:31], s62 offen{LP}")
    a("s_branch L_p2")
    L("L_router")
    a("v_mov_b32 v36, 0")
    for j in range(8):
        a(f"v_dot2_f32_bf16 v36, v{20+j}, v{28+j}, v36")
    for ctl in ["quad_perm:[1,0,3,2]", "quad_perm:[2,3,0,1]", "row_half_mirror", "row_mirror"]:
        a("s_nop 2")
        a(f"v_add_f32_dpp v36, v36, v36 {ctl} row_mask:0xf bank_mask:0xf")
    a("v_mov_b32 v37, v36")
    a("s_nop 1")
    a("v_permlane16_swap_b32 v36, v37")
    a("v_add_f32 v36, v36, v37")
    a("v_mov_b32 v37, v36")
    a("s_nop 1")
    a("v_permlane32_swap_b32 v36, v37")
    a("v_add_f32 v36, v36, v37")
    a("v_cvt_pk_bf16_f32 v36, v36, v36")
    a("v_and_b32 v36, 0xffff0000, v36")
    a("v_mul_f32 v36, 0xbfb8aa3b, v36")
    a("v_exp_f32 v36, v36")
    a("s_nop 0")
    a("v_add_f32 v36, 1.0, v36")
    a("v_rcp_f32 v36, v36")
    a("s_and_b32 s62, s44, 0xffff")
    a("v_cvt_pk_bf16_f32 v36, v36, v36")
    a("v_lshl_or_b32 v36, v36, 16, s62")
    for j in range(1, 4): a(f"v_mov_b32 v{36+j}, s{44+j}")
    a("s_lshl_b32 s62, s56, 7")
    a("s_lshl4_add_u32 s62, s3, s62")
    a(f"s_add_u32 s62, s62, {WS_RS}")
    a("v_mov_b32 v20, 0")
    a("s_mov_b64 exec, 1")
    a("buffer_store_dwordx4 v[36:39], v20, s[28:31], s62 offen sc1")
    a("s_mov_b64 exec, -1")
    a("s_branch L_p2")

    if probe >= 0:
        L("L_stamp")
        a("s_waitcnt lgkmcnt(0)")
        a(f"s_sub_u32 s90, s{76+2*probe}, s76")
        a(f"s_cmp_eq_u32 s{76+2*probe}, 0")
        a("s_cselect_b32 s90, 0, s90")
        if prole:
            a("s_cmp_eq_u32 s58, 3")
            a("s_cselect_b32 s90, 0, s90" if prole == 1 else "s_cselect_b32 s90, s90, 0")
        a("s_lshl_b32 s90, s90, 2")
        a("s_add_u32 s90, s90, 1500")
        a("s_min_u32 s90, s90, 100000")
        L("L_spin")
        a("s_memrealtime s[92:93]")
        a("s_waitcnt lgkmcnt(0)")
        a("s_sub_u32 s92, s92, s76")
        a("s_cmp_lt_u32 s92, s90")
        a("s_cbranch_scc1 L_spin")
    elif stamps:
        L("L_stamp")
        a("s_mov_b64 exec, -1")
        a("s_waitcnt lgkmcnt(0)")
        a("s_add_u32 s92, s18, 0x8000000"); a("s_addc_u32 s93, s19, 0")
        a("s_mov_b32 s94, 0x100000"); a("s_mov_b32 s95, 0x20000")
        a("s_lshl3_add_u32 s90, s2, s3"); a("s_lshl_b32 s90, s90, 6")
        for j in range(14): a(f"v_mov_b32 v{100+j}, s{76+j}")
        a("v_mov_b32 v114, 0x54414D50"); a("v_mov_b32 v115, 0x53"); a("v_mov_b32 v116, 0")
        a("s_mov_b64 exec, 1")
        for j in range(4): a(f"buffer_store_dwordx4 v[{100+4*j}:{103+4*j}], v116, s[92:95], s90 offen offset:{16*j}")
    L("L_end")
    a("s_endpgm")
    return HEADER.format(kn=KN, lds=lds) + "\n".join(o) + FOOTER.format(kn=KN, vgpr=128)

def I(lines): return ["    " + x if not x.endswith(":") else x for x in lines]

def common_setup():
    r = []
    a = r.append
    a("s_mov_b32 s24, s12"); a("s_mov_b32 s25, s13"); a("s_mov_b32 s26, 7340032"); a("s_mov_b32 s27, 0x20000")
    a("s_mov_b32 s28, s18"); a("s_mov_b32 s29, s19"); a(f"s_mov_b32 s30, {WS_SIZE}"); a("s_mov_b32 s31, 0x20000")
    a("s_mov_b32 s75, 0")
    a("s_mov_b32 s73, 0x07060302")
    a("v_mov_b32 v15, 0x3ff")
    a("v_lshlrev_b32 v12, 4, v1")
    a("v_bfe_u32 v16, v1, 3, 2")
    a("v_lshrrev_b32 v17, 5, v1")
    a("v_lshl_add_u32 v16, v17, 3, v16")
    a("v_lshrrev_b32 v17, 4, v1")
    a("v_lshlrev_b32 v17, 1, v17")
    a("v_xor_b32 v17, v17, v1")
    a("v_and_b32 v17, 7, v17")
    a("v_lshlrev_b32 v17, 4, v17")
    a("v_lshl_add_u32 v8, v16, 11, v17")
    a("v_bfe_u32 v9, v1, 3, 2")
    a("v_xor_b32 v9, s3, v9")
    a("v_and_b32 v9, 3, v9")
    a("v_lshlrev_b32 v9, 5, v9")
    a("v_lshrrev_b32 v18, 2, v1")
    a("v_lshl_add_u32 v9, v18, 7, v9")
    a("v_and_b32 v18, 3, v1")
    a("v_lshl_add_u32 v9, v18, 3, v9")
    a("v_and_b32 v18, 7, v1")
    a("v_lshlrev_b32 v18, 4, v18")
    a("v_bfe_u32 v10, v1, 3, 1")
    a("v_lshl_add_u32 v10, v10, 11, v18")
    a("v_lshrrev_b32 v11, 4, v1")
    a("v_lshl_add_u32 v10, v11, 7, v10")
    a("v_lshrrev_b32 v11, 3, v1")
    a("v_lshl_add_u32 v11, v11, 11, v18")
    a("v_and_b32 v7, 7, v1")
    a("v_mul_u32_u24 v7, 576, v7")
    a("v_lshrrev_b32 v19, 4, v1")
    a("v_lshl_add_u32 v7, v19, 4, v7")
    a(f"v_add_u32 v7, {L_X}, v7")
    a("v_lshlrev_b32 v13, 3, v0")
    a(f"v_add_u32 v13, {L_H}, v13")
    a("v_lshl_add_u32 v14, v19, 7, v18")
    a(f"v_add_u32 v14, {L_H}, v14")
    a("s_lshl2_add_u32 s69, s61, s3")
    a("s_lshl_b32 s69, s69, 12")
    a("s_lshl2_add_u32 s70, s59, s57")
    a("s_lshl_b32 s70, s70, 8")
    a("s_add_u32 s69, s69, s70")
    a(f"s_add_u32 s69, s69, {WS_PART}")
    a("s_lshl1_add_u32 s72, s56, s59")
    a("s_mul_i32 s70, s72, 7")
    a("s_add_u32 s70, s70, s3")
    a("s_lshl_b32 s71, s70, 10")
    a(f"s_add_u32 s71, s71, {WS_H}")
    a("s_lshl_b32 s70, s70, 16")
    a("s_bfe_u32 s74, s2, 0x40003")
    a("s_lshl_b32 s52, s74, 7")
    a("s_add_u32 s70, s70, s52")
    a("s_lshl_b32 s72, s72, 7")
    a("s_lshl2_add_u32 s74, s74, s3")
    a("s_lshl_b32 s74, s74, 13")
    a("s_add_u32 s72, s72, s74")
    a(f"s_add_u32 s72, s72, {WS_P}")
    return I(r)

def tags():
    r = ["s_waitcnt lgkmcnt(0)"]
    for j in range(4): r.append(f"s_add_u32 s{44+j}, s{44+j}, {CJ[j]}")
    for j in range(4): r.append(f"s_and_b32 s{48+j}, s{44+j}, 0x3ff")
    return I(r)

def xreads():
    r = []
    for kb in range(8):
        if kb == 0:
            r.append("ds_read_b128 v[64:67], v7")
        else:
            r.append(f"v_xor_b32 v18, {kb << 6}, v7")
            r.append(f"ds_read_b128 v[{64+4*kb}:{67+4*kb}], v18")
    return I(r)

def publish(voff, sbase, pol):
    r = ["s_nop 7"]
    for j in range(4): r.append(f"v_add_u32 v{40+j}, 0x200, v{40+j}")
    for j in range(4): r.append(f"v_bfi_b32 v{40+j}, v15, s{44+j}, v{40+j}")
    r.append("s_mov_b32 exec_hi, 0")
    r.append(f"buffer_store_dwordx4 v[40:43], v{voff}, s[28:31], s{sbase} offen{pol}")
    r.append("s_mov_b32 exec_hi, -1")
    return I(r)

def wd_loads(NT, skip):
    r = ["s_cmp_eq_u32 s3, 7", f"s_cbranch_scc1 {skip}", "s_lshl_b32 m0, s3, 12"]
    for i, rows in enumerate([0, 16, 4, 20]):
        r.append(f"s_add_u32 s68, s70, {rows*2048 - i*1024}")
        r.append(f"buffer_load_dwordx4 v8, s[24:27], s68 offen offset:{i*1024}{NT} lds")
    return I(r)

def check8(ok):
    r = ["s_waitcnt vmcnt(0)"]
    for j in range(8): r.append(f"v_xor_b32 v{44+j}, s{48+(j&3)}, v{44+j}")
    r += ["v_or3_b32 v52, v44, v45, v46", "v_or3_b32 v53, v47, v48, v49", "v_or3_b32 v52, v52, v50, v51",
          "v_and_or_b32 v52, v52, v15, 0", "v_and_or_b32 v52, v53, v15, v52",
          "v_cmp_ne_u32 vcc, 0, v52", f"s_cbranch_vccz {ok}"]
    return I(r)

def redscatter(b):
    return I(["s_nop 1", f"v_permlane32_swap_b32 v{b}, v{b+2}", f"v_permlane32_swap_b32 v{b+1}, v{b+3}",
              f"v_add_f32 v{b}, v{b}, v{b+2}", f"v_add_f32 v{b+1}, v{b+1}, v{b+3}", "s_nop 1",
              f"v_permlane16_swap_b32 v{b}, v{b+1}", f"v_add_f32 v{b}, v{b}, v{b+1}"])

def redscatter2(b, c):
    r = []
    for x in (b, c):
        r += [f"v_permlane32_swap_b32 v{x}, v{x+2}", f"v_permlane32_swap_b32 v{x+1}, v{x+3}"]
    for x in (b, c):
        r += [f"v_add_f32 v{x}, v{x}, v{x+2}", f"v_add_f32 v{x+1}, v{x+1}, v{x+3}"]
    r += ["s_nop 0", f"v_permlane16_swap_b32 v{b}, v{b+1}", f"v_permlane16_swap_b32 v{c}, v{c+1}",
          f"v_add_f32 v{b}, v{b}, v{b+1}", f"v_add_f32 v{c}, v{c}, v{c+1}"]
    return I(r)

if __name__ == "__main__":
    out = sys.argv[1]
    kw = {}
    for arg in sys.argv[2:]:
        k, v = arg.split("=")
        kw[k] = int(v)
    open(out, "w").write(gen(**kw))
```

```python
import sys
from gen import KN, HEADER, FOOTER, CJ, I, redscatter

WS_RS   = 0x1000
WS_H    = 0x10000
WS_PART = 0x40000
WS_P    = 0x200000
WS_SIZE = 0x400000
L_T = 0x8000
L_X = 0x18000
L_H = 0x1A000
LDS = 0x1B000
POLL_LIMIT = 1 << 16
OOB = 0x800000
XV, WV = 64, 128

def gen(stamps=0, nt=1, probe=-1, wb=31, prole=0, outsc1=1, w0=0, w3=2, wh=1, pf=1, swap=1, merge=2, pnt=0, w1=-1, tb=8, hcnt=2):
    if probe >= 0: stamps = 1
    if w1 < 0: w1 = w0
    assert max(w0, w1, w3, wh) <= (4 if merge == 2 else 3)
    TM = (1 << tb) - 1
    o = []
    def a(s): o.append("    " + s)
    def L(s): o.append(s + ":")
    NT = " nt" if nt else ""
    def stamp(k):
        if stamps: a(f"s_memrealtime s[{76+2*k}:{77+2*k}]")
    def srd(d, lo, size):
        a(f"s_mov_b64 s[{d}:{d+1}], s[{lo}:{lo+1}]")
        a(f"s_mov_b32 s{d+2}, {size}"); a(f"s_mov_b32 s{d+3}, 0x20000")
    def fallback(lbl, cnt=75):
        a(f"s_add_u32 s{cnt}, s{cnt}, 1")
        a(f"s_and_b32 s74, s{cnt}, {wb}")
        a(f"s_cbranch_scc1 {lbl}")
        a("buffer_wbl2 sc1")
        a(f"s_cmp_lt_u32 s{cnt}, {POLL_LIMIT}")
        a(f"s_cbranch_scc1 {lbl}")
        a("s_endpgm")
    def tr(n, addr, off):
        a(f"ds_read_b64_tr_b16 v[{WV+4*n}:{WV+1+4*n}], v{addr} offset:{off}")
        a(f"ds_read_b64_tr_b16 v[{WV+2+4*n}:{WV+3+4*n}], v{addr} offset:{off + 2048}")
    def p1(slots):
        for n, sl in enumerate(slots): tr(n, 6, sl*4096)
        nk = len(slots)
        for n, sl in enumerate(slots):
            a(f"s_waitcnt lgkmcnt({2*(nk-1-n)})")
            a(f"v_mfma_f32_16x16x32_bf16 v[40:43], v[{XV+4*sl}:{XV+3+4*sl}], v[{WV+4*n}:{WV+3+4*n}], v[40:43]")
    def publish(voff, sbase, pol):
        a("s_mov_b32 exec_hi, 0")
        a("s_nop 6")
        for j in range(4): a(f"v_add_u32 v{40+j}, {1 << (tb-1)}, v{40+j}")
        for j in range(4): a(f"v_bfi_b32 v{40+j}, v15, s{44+j}, v{40+j}")
        a(f"buffer_store_dwordx4 v[40:43], v{voff}, s[28:31], s{sbase} offen{pol}")
        a("s_mov_b32 exec_hi, -1")
    def wd_loads(kb="s3", base="s70"):
        a(f"s_lshl_b32 m0, {kb}, 12")
        for i, rows in enumerate([0, 16, 4, 20]):
            a(f"s_add_u32 s68, {base}, {rows*2048 - i*1024}")
            a(f"buffer_load_dwordx4 v8, s[24:27], s68 offen offset:{i*1024}{NT} lds")
    def check8(ok):
        a("s_waitcnt vmcnt(0)")
        for j in range(8): a(f"v_xor_b32 v{44+j}, s{48+(j&3)}, v{44+j}")
        a("v_or3_b32 v52, v44, v45, v46"); a("v_or3_b32 v53, v47, v48, v49"); a("v_or3_b32 v52, v52, v50, v51")
        a("v_or_b32 v52, v52, v53"); a("v_and_b32 v52, v52, v15")
        a("v_cmp_ne_u32 vcc, 0, v52"); a(f"s_cbranch_vccz {ok}")

    END = "L_stamp" if stamps else "L_end"
    if stamps:
        for j in range(76, 90): a(f"s_mov_b32 s{j}, 0")
    stamp(0)
    a("s_load_dwordx4 s[8:11], s[0:1], 16")
    a("s_load_dwordx2 s[32:33], s[0:1], 0")
    a("s_load_dwordx2 s[28:29], s[0:1], 56")
    a("s_load_dwordx2 s[24:25], s[0:1], 32")
    a("s_load_dwordx2 s[40:41], s[0:1], 8")
    a("s_load_dwordx2 s[36:37], s[0:1], 40")
    a("s_cmp_ge_u32 s2, 256")
    a("s_cbranch_scc1 L_end")
    a("v_lshrrev_b32 v2, 6, v0")
    a("v_and_b32 v1, 63, v0")
    a("v_readfirstlane_b32 s3, v2")
    a("s_getpc_b64 s[66:67]")
    L("L_pc")
    a("v_lshlrev_b32 v54, 7, v1")
    a("s_cmp_lg_u32 s3, 7")
    a("s_cbranch_scc1 L_nopf")
    a("v_min_u32 v54, L_end-L_pc, v54")
    a("global_load_dword v60, v54, s[66:67]")
    L("L_nopf")
    a("s_and_b32 s56, s2, 7")
    a("s_bfe_u32 s57, s2, 0x20003")
    a("s_bfe_u32 s58, s2, 0x20005")
    a("s_lshr_b32 s59, s2, 7")
    a("s_add_u32 s63, s56, 3")
    a("s_and_b32 s63, s63, 7")
    a("s_min_u32 s63, s63, 6")
    a("s_mul_i32 s61, s56, 7")
    a("s_bfe_u32 s62, s2, 0x30004")
    a("s_cmp_ge_u32 s62, s63")
    a("s_addc_u32 s62, s62, 0")
    a("s_and_b32 s65, s57, 1")
    a("s_lshl_b32 s65, s65, 1")
    a("s_cmp_eq_u32 s58, 3")
    a("s_cselect_b32 s62, s63, s62")
    a("s_cselect_b32 s65, s57, s65")
    a("s_cselect_b32 s64, 4, 8")
    a("s_cselect_b32 s74, 16, 0")
    a("s_add_u32 s62, s62, s61")
    a("v_lshrrev_b32 v17, 3, v1")
    a("v_and_b32 v17, 6, v17")
    a("v_xor_b32 v17, v17, v1")
    a("v_and_b32 v17, 7, v17")
    a("v_lshlrev_b32 v17, 4, v17")
    a("v_bfe_u32 v16, v1, 3, 2")
    a("v_lshrrev_b32 v9, 5, v1")
    a("v_lshl_add_u32 v16, v9, 3, v16")
    a("v_mul_u32_u24 v4, 7168, v16")
    a("v_add_u32 v4, v4, v17")
    a("v_lshl_add_u32 v8, v16, 11, v17")
    a("v_and_b32 v18, 7, v1")
    a("v_lshlrev_b32 v18, 4, v18")
    a("v_bfe_u32 v10, v1, 3, 1")
    a("v_lshl_add_u32 v10, v10, 11, v18")
    a("v_bfe_u32 v11, v1, 4, 1")
    a("v_lshl_add_u32 v10, v11, 7, v10")
    a("v_lshlrev_b32 v12, 4, v1")
    a("s_lshr_b32 s66, s3, 2")
    a("s_mul_i32 s67, s66, s64")
    a("s_lshl3_add_u32 s67, s65, s67")
    a("s_lshl_b32 s67, s67, 3")
    a("s_and_b32 s68, s3, 1")
    a("s_lshl2_add_u32 s67, s68, s67")
    a("s_bfe_u32 s68, s3, 0x10001")
    a("s_add_u32 s67, s67, s68")
    a(f"s_mul_i32 s67, s67, {4*7168}")
    a("s_lshl_b32 s68, s62, 7")
    a("s_add_u32 s67, s67, s68")
    a("s_and_b32 s68, s3, 3")
    a("s_lshl_b32 s66, s66, 5")
    a("s_add_u32 s66, s66, s68")
    a("s_add_u32 s66, s66, s74")
    a("s_lshl_b32 s66, s66, 10")
    a(f"s_add_u32 s71, s66, {L_T}")
    a(f"s_mov_b32 s66, {32*7168}")
    a("s_mov_b32 s22, 7340032"); a("s_mov_b32 s23, 0x20000")
    a("s_mov_b64 s[26:27], s[22:23]")
    a(f"s_mov_b32 s30, {WS_SIZE}"); a("s_mov_b32 s31, s23")
    a("s_movk_i32 s34, 16384"); a("s_mov_b32 s35, s23")
    a("s_mov_b64 s[38:39], s[34:35]")
    a("s_movk_i32 s42, 2048"); a("s_mov_b32 s43, s23")
    a("s_cmp_ge_u32 s3, 4")
    a("s_cbranch_scc1 L_addr")
    L("L_issue")
    a("s_cmp_eq_u32 s59, 0")
    a("s_mov_b32 m0, s71")
    a("s_waitcnt lgkmcnt(0)")
    a("s_cselect_b64 s[20:21], s[8:9], s[10:11]")
    a("s_cmp_eq_u32 s58, 3")
    a("s_cbranch_scc1 L_short")
    for kb in range(8):
        if kb == 4: L("L_short")
        a(f"buffer_load_dwordx4 v4, s[20:23], s67 offen{NT} lds")
        if kb < 7:
            a("s_addk_i32 m0, 0x1000")
            a("s_add_u32 s67, s67, s66")
    a("s_load_dwordx4 s[44:47], s[28:29], 0")
    a("s_cmp_ge_u32 s3, 4")
    a("s_cbranch_scc1 L_rest")
    L("L_addr")
    a("s_lshl2_add_u32 s60, s59, s57")
    a("s_lshl2_add_u32 s69, s62, s68")
    a("s_lshr_b32 s52, s57, 1")
    a("s_cmp_eq_u32 s58, 3")
    a("s_cselect_b32 s52, s52, 0")
    a("s_lshl2_add_u32 s69, s69, s52")
    a("s_lshl1_add_u32 s69, s69, s59")
    a("s_and_b32 s52, s57, 1")
    a("s_lshl1_add_u32 s69, s69, s52")
    a("s_lshl_b32 s69, s69, 8")
    a(f"s_add_u32 s69, s69, {WS_PART}")
    a("s_bfe_u32 s53, s2, 0x30003")
    a("s_lshl3_add_u32 s53, s59, s53")
    a("s_mul_i32 s55, s53, 7")
    a("s_add_u32 s55, s55, s3")
    a("s_lshl_b32 s70, s55, 16")
    if swap:
        a("s_cmp_eq_u32 s56, 0")
        a("s_cselect_b32 s101, 5, s56")
        a("s_cmp_eq_u32 s56, 5")
        a("s_cselect_b32 s101, 0, s101")
    else:
        a("s_mov_b32 s101, s56")
    a("s_cmp_lt_u32 s58, 2")
    a("s_addc_u32 s54, s101, s101")
    a("s_lshl_b32 s52, s54, 7")
    a("s_add_u32 s70, s70, s52")
    a("s_bitcmp1_b32 s57, 0")
    a(f"s_cselect_b32 s52, {w1}, {w0}")
    a("s_and_b32 s100, s54, 7")
    a("s_cmp_eq_u32 s100, 3")
    a(f"s_cselect_b32 s100, {w3}, s52")
    a("s_cmp_eq_u32 s58, 3")
    a(f"s_cselect_b32 s100, {wh}, s100")
    a("s_lshl_b32 s96, s56, 10")
    a(f"s_add_u32 s96, s96, {WS_RS}")
    a("s_lshl2_add_u32 s52, s3, s58")
    a("s_cmp_lt_u32 s3, 4")
    a("s_cbranch_scc1 L_lo")
    a("s_lshl_b32 s74, s74, 4")
    a("s_lshl_b32 s64, s74, 15")
    a("s_lshl_b32 s65, s65, 9")
    a("s_lshl_b32 s72, s68, 12")
    a("s_add_u32 s65, s65, s72")
    a("s_lshr_b32 s72, s72, 1")
    a(f"s_add_u32 m0, s72, {L_X}")
    a("s_lshl_b32 s72, s68, 3")
    a("v_xor_b32 v6, s72, v1")
    a("v_add_u32 v2, 1, v9")
    a("v_mul_u32_u24 v2, s74, v2")
    a("v_bfe_u32 v7, v6, 4, 1")
    a("v_xor_b32 v7, 1, v7")
    a("v_mul_u32_u24 v7, s64, v7")
    a("v_sub_u32 v2, v7, v2")
    a("v_lshl_add_u32 v13, v6, 4, v2")
    a("v_xor_b32 v6, 4, v6")
    a("v_lshl_add_u32 v14, v6, 4, v2")
    a("s_add_u32 s74, s65, 1024")
    a("s_waitcnt lgkmcnt(0)")
    a("buffer_load_dwordx4 v13, s[32:35], s65 offen lds")
    a("buffer_load_dwordx4 v14, s[32:35], s74 offen offset:1024 lds")
    a("buffer_load_dword v61, v10, s[28:31], s69 offen sc1")
    a("s_cmp_lg_u32 s52, 31")
    a("s_cbranch_scc1 L_issue")
    a("s_lshl_b32 s72, s60, 11")
    a("s_lshl_b32 s62, s60, 7")
    a("s_add_u32 s62, s62, s96")
    a("buffer_load_dwordx4 v[64:67], v12, s[32:35], s72 offen")
    a("buffer_load_dwordx4 v[68:71], v12, s[32:35], s72 offen offset:1024")
    a("buffer_load_dwordx4 v[72:75], v12, s[40:43], 0 offen")
    a("buffer_load_dwordx4 v[76:79], v12, s[40:43], 0 offen offset:1024")
    a("buffer_load_dword v62, v18, s[28:31], s62 offen sc1")
    a("s_branch L_issue")
    L("L_lo")
    a("s_cmp_ge_u32 s3, s100")
    a("s_cbranch_scc1 L_rest")
    if merge == 2:
        wd_loads()
    else:
        a("s_sub_u32 s64, 6, s3")
        a("s_sub_u32 s65, s64, s3")
        a("s_lshl_b32 s65, s65, 16")
        a("s_add_u32 s65, s65, s70")
        wd_loads("s64", "s65")
    L("L_rest")
    if merge != 2: a("s_sub_u32 s100, 7, s100")
    a("s_mov_b32 s75, 0")
    a("s_mov_b32 s73, 0x07060302")
    a(f"v_mov_b32 v15, {TM}")
    a("v_lshrrev_b32 v19, 4, v1")
    a("v_bfe_u32 v9, v1, 3, 2")
    a("v_xor_b32 v9, s3, v9")
    a("v_and_b32 v9, 3, v9")
    a("v_lshlrev_b32 v9, 5, v9")
    a("v_lshrrev_b32 v6, 2, v1")
    a("v_lshl_add_u32 v9, v6, 7, v9")
    a("v_and_b32 v7, 3, v1")
    a("v_lshl_add_u32 v9, v7, 3, v9")
    a(f"v_add_u32 v6, {L_T}, v9")
    a("v_lshrrev_b32 v11, 3, v1")
    a("v_lshl_add_u32 v11, v11, 11, v18")
    a("v_and_b32 v7, 7, v1")
    a("v_mul_u32_u24 v7, 1088, v7")
    a("v_lshl_add_u32 v7, v19, 4, v7")
    a(f"v_add_u32 v7, {L_X}, v7")
    a("v_lshlrev_b32 v13, 3, v0")
    a(f"v_add_u32 v13, {L_H}, v13")
    a("v_lshl_add_u32 v14, v19, 7, v18")
    a(f"v_add_u32 v14, {L_H}, v14")
    a("s_lshl_b32 s71, s55, 10")
    a(f"s_add_u32 s71, s71, {WS_H}")
    if merge == 2:
        a("s_sub_u32 s71, s71, 4096")
        a("s_mul_i32 s65, s53, 7168")
        a(f"s_add_u32 s65, s65, {WS_H + 6144}")
        a(f"v_subrev_u32 v13, 2048, v13")
        a("v_lshlrev_b32 v26, 3, v1")
        a(f"v_add_u32 v26, {L_H + 3072}, v26")
    else:
        a("s_cmp_eq_u32 s3, 3")
        a("s_cselect_b32 s65, 0, 4096")
        a("s_add_u32 s65, s65, s71")
    a("s_lshl_b32 s72, s53, 7")
    a("s_lshl2_add_u32 s64, s54, s3")
    a("s_lshl_b32 s64, s64, 13")
    a("s_add_u32 s72, s72, s64")
    a(f"s_add_u32 s72, s72, {WS_P}")
    a("s_bfe_u32 s99, s53, 0x10001")
    a("s_lshl_b32 s99, s99, 2")
    a("v_add_u32 v20, s99, v19")
    a("v_lshlrev_b32 v21, 7, v20")
    a("s_lshr_b32 s97, s53, 2")
    a("s_lshl2_add_u32 s97, s54, s97")
    a("s_and_b32 s99, s53, 1")
    a("s_lshl1_add_u32 s97, s97, s99")
    a("s_lshl_b32 s97, s97, 4")
    a("v_lshrrev_b32 v22, 3, v18")
    a("v_lshl_add_u32 v22, v20, 11, v22")
    a("s_lshl4_add_u32 s98, s54, s53")
    a("s_lshl_b32 s98, s98, 11")
    a(f"s_add_u32 s98, s98, {WS_P}")
    a("v_and_b32 v24, 15, v1")
    a("v_lshlrev_b32 v24, 7, v24")
    a("s_or_b32 s99, s53, 4")
    a("s_mul_i32 s99, s99, 7")
    a("s_lshl1_add_u32 s99, s58, s99")
    if merge == 2: a("s_add_u32 s99, s99, 1")
    a("s_lshl_b32 s99, s99, 8")
    a("s_add_u32 s99, s99, s101")
    a("s_lshl_b32 s99, s99, 8")
    a("v_lshlrev_b32 v25, 11, v1")
    a("s_add_u32 s67, s61, s60")
    a("s_lshl3_add_u32 s67, s67, s3")
    a("s_lshl_b32 s66, s67, 11")
    a(f"s_add_u32 s66, s66, {WS_PART}")
    a("s_lshl_b32 s67, s67, 8")
    a(f"s_add_u32 s67, s67, {WS_H}")
    a("v_bfe_u32 v54, v1, 3, 1")
    a("v_lshl_add_u32 v56, v54, 2, v19")
    a("v_lshrrev_b32 v54, 2, v18")
    a("v_lshl_add_u32 v56, v56, 5, v54")
    a("s_waitcnt lgkmcnt(0)")
    for j in range(4): a(f"s_add_u32 s{44+j}, s{44+j}, {CJ[j]}")
    for j in range(4): a(f"s_and_b32 s{48+j}, s{44+j}, {TM}")
    a("v_and_b32 v54, 3, v1")
    a("v_mov_b32 v55, s44")
    for j in range(1, 4):
        a(f"v_mov_b32 v57, s{44+j}")
        a(f"v_cmp_eq_u32 vcc, {j}, v54")
        a("s_nop 1")
        a("v_cndmask_b32 v55, v55, v57, vcc")
    a("v_and_b32 v55, 0xffff, v55")
    for j in range(4): a(f"v_mov_b32 v{40+j}, 0")

    a("s_cmp_lt_u32 s3, 4")
    a("s_cbranch_scc1 L_comp")
    a("s_waitcnt vmcnt(8)")
    a("s_cmp_lg_u32 s58, 3")
    a("s_cbranch_scc1 L_s0")
    a("s_waitcnt vmcnt(4)")
    a("s_cmp_eq_u32 s52, 31")
    a("s_cbranch_scc1 L_router")
    L("L_s0")
    a("s_barrier")
    a("s_waitcnt vmcnt(3)")
    a("s_barrier")
    a("s_waitcnt vmcnt(1)")
    a("s_barrier")
    a("s_waitcnt vmcnt(0)")
    a("s_barrier")
    stamp(2)
    a("s_branch L_pub")
    L("L_comp")
    a("s_waitcnt vmcnt(0)")
    a("s_barrier")
    for sl in range(16):
        if sl == 0: a(f"ds_read_b128 v[{XV}:{XV+3}], v7")
        else:
            a(f"v_xor_b32 v18, {sl << 6}, v7")
            a(f"ds_read_b128 v[{XV+4*sl}:{XV+3+4*sl}], v18")
        if sl == 11: a("s_waitcnt lgkmcnt(4)")
    a("s_waitcnt lgkmcnt(4)")
    a("s_cmp_eq_u32 s58, 3")
    a("s_cbranch_scc1 L_short0")
    p1([0, 1, 2, 3])
    L("L_short0")
    p1([4, 5, 6, 7])
    a("s_barrier")
    a("s_cbranch_scc1 L_short1")
    p1([8, 9, 10, 11])
    L("L_short1")
    p1([12])
    a("s_barrier")
    p1([13, 14])
    a("s_barrier")
    stamp(2)
    p1([15])
    publish(10, 69, " nt" if pnt else "")
    L("L_pub")
    a("s_barrier")
    a("s_cmp_lg_u32 s58, 3")
    a("s_cbranch_scc1 L_defer")
    a("s_cmp_eq_u32 s60, 7")
    a("s_cbranch_scc1 L_defer")
    a("s_cmp_eq_u32 s60, s63")
    a("s_cbranch_scc1 L_r4_poll")
    L("L_r_poll")
    a("buffer_load_dwordx4 v[44:47], v12, s[28:31], s66 offen sc1")
    a("s_waitcnt vmcnt(0)")
    for j in range(4): a(f"v_xor_b32 v{44+j}, s{48+j}, v{44+j}")
    a("v_or3_b32 v52, v44, v45, v46")
    a("v_or_b32 v52, v52, v47")
    a("v_and_b32 v52, v52, v15")
    a("v_cmp_ne_u32 vcc, 0, v52")
    a("s_cbranch_vccz L_r_ok")
    fallback("L_r_poll")
    L("L_r4_poll")
    a("buffer_load_dwordx4 v[44:47], v12, s[28:31], s66 offen sc1")
    a("buffer_load_dwordx4 v[48:51], v12, s[28:31], s66 offen offset:1024 sc1")
    check8("L_r4_ok")
    fallback("L_r4_poll")
    L("L_r4_ok")
    for j in range(4): a(f"v_add_f32 v{44+j}, v{44+j}, v{48+j}")
    a("s_nop 0")
    L("L_r_ok")
    stamp(6)
    a("v_permlane16_swap_b32 v44, v45")
    a("v_permlane16_swap_b32 v46, v47")
    a("v_add_f32 v44, v44, v45")
    a("v_add_f32 v46, v46, v47")
    a("s_nop 1")
    a("v_permlane32_swap_b32 v44, v46")
    a("v_cvt_pk_bf16_f32 v44, v44, v46")
    a("v_lshlrev_b32 v45, 16, v44")
    a("v_mul_f32 v46, 0xbfb8aa3b, v45")
    a("v_exp_f32 v46, v46")
    a("v_and_b32 v44, 0xffff0000, v44")
    a("v_add_f32 v46, 1.0, v46")
    a("v_rcp_f32 v46, v46")
    a("s_nop 0")
    a("v_mul_f32 v45, v45, v46")
    a("v_cvt_pk_bf16_f32 v45, v45, v45")
    a("v_and_b32 v45, 0xffff0000, v45")
    a("v_mul_f32 v45, v45, v44")
    a("v_cvt_pk_bf16_f32 v45, v45, v45")
    a("v_lshl_or_b32 v45, v45, 16, v55")
    a("buffer_store_dword v45, v56, s[28:31], s67 offen sc1")
    a("s_barrier")

    L("L_defer")
    stamp(3)
    a("s_cmp_eq_u32 s3, 7")
    a("s_cbranch_scc1 L_final")
    a("s_cmp_lt_u32 s3, s100" if merge == 2 else "s_cmp_ge_u32 s3, s100")
    a("s_cbranch_scc1 L_p2")
    wd_loads()
    L("L_p2")
    if merge == 2:
        a("s_cmp_ge_u32 s3, 4")
        a("s_cbranch_scc1 L_hr")
        a("s_waitcnt vmcnt(0)")
        stamp(1)
        a("s_barrier")
    else:
        a("s_waitcnt vmcnt(0)")
        if not merge:
            a("s_barrier")
        stamp(1)
        a("s_cmp_ge_u32 s3, 4")
        a("s_cbranch_scc1 L_b")
        if not merge:
            a("buffer_load_dwordx4 v[44:47], v12, s[28:31], s71 offen sc1")
            a("buffer_load_dwordx4 v[48:51], v12, s[28:31], s65 offen sc1")
            for kb in range(7): tr(kb, 9, kb*4096)
            a("s_branch L_h_chk")
        L("L_h_poll")
        a("buffer_load_dwordx4 v[44:47], v12, s[28:31], s71 offen sc1")
        a("buffer_load_dwordx4 v[48:51], v12, s[28:31], s65 offen sc1")
        L("L_h_chk")
        a("s_waitcnt vmcnt(0)")
        for j in range(8): a(f"v_xor_b32 v{32+j}, s{44+(j&3)}, v{44+j}")
        a("v_or3_b32 v32, v32, v33, v34"); a("v_or3_b32 v35, v35, v36, v37"); a("v_or3_b32 v32, v32, v38, v39")
        a("v_or_b32 v32, v32, v35")
        a("v_and_b32 v32, 0xffff, v32")
        a("v_cmp_ne_u32 vcc, 0, v32")
        a("v_perm_b32 v44, v45, v44, s73")
        a("v_perm_b32 v45, v47, v46, s73")
        a("v_perm_b32 v46, v49, v48, s73")
        a("v_perm_b32 v47, v51, v50, s73")
        a("s_cbranch_vccz L_h_ok")
        fallback("L_h_poll")
        L("L_h_ok")
        a("ds_write_b64 v13, v[44:45]")
        a("ds_write_b64 v13, v[46:47] offset:2048")
        a("s_waitcnt lgkmcnt(0)")
        a("s_barrier")
    stamp(4)
    if merge:
        for kb in range(5):
            a(f"ds_read_b128 v[{XV+4*kb}:{XV+3+4*kb}], v14 offset:{kb*512}")
            tr(kb, 9, kb*4096)
        for kb in range(7):
            rem = min(7, kb + 5) - kb - 1
            a(f"s_waitcnt lgkmcnt({3*rem})")
            c = "0" if kb == 0 else "v[40:43]"
            a(f"v_mfma_f32_16x16x32_bf16 v[40:43], v[{XV+4*kb}:{XV+3+4*kb}], v[{WV+4*kb}:{WV+3+4*kb}], {c}")
            if kb + 5 < 7:
                a(f"ds_read_b128 v[{XV+4*(kb+5)}:{XV+3+4*(kb+5)}], v14 offset:{(kb+5)*512}")
                tr(kb + 5, 9, (kb+5)*4096)
    else:
        for kb in range(7):
            a(f"ds_read_b128 v[{XV+4*kb}:{XV+3+4*kb}], v14 offset:{kb*512}")
        for kb in range(7):
            a(f"s_waitcnt lgkmcnt({6-kb})")
            c = "0" if kb == 0 else "v[40:43]"
            a(f"v_mfma_f32_16x16x32_bf16 v[40:43], v[{XV+4*kb}:{XV+3+4*kb}], v[{WV+4*kb}:{WV+3+4*kb}], {c}")
    publish(11, 72, "")
    stamp(5)
    a("s_barrier")
    a(f"s_branch {END}" if stamps else "s_endpgm")
    if merge == 2:
        L("L_hr")
        a(f"s_waitcnt vmcnt({hcnt})")
        stamp(1)
        L("L_h_poll")
        a("buffer_load_dwordx4 v[44:47], v12, s[28:31], s71 offen sc1")
        a("buffer_load_dwordx4 v[48:51], v12, s[28:31], s71 offen offset:3072 sc1")
        a("buffer_load_dwordx4 v[52:55], v12, s[28:31], s65 offen sc1")
        a("s_waitcnt vmcnt(0)")
        for j in range(12): a(f"v_xor_b32 v{64+j}, s{44+(j&3)}, v{44+j}")
        for j in range(4): a(f"v_or3_b32 v{64+3*j}, v{64+3*j}, v{65+3*j}, v{66+3*j}")
        a("v_or3_b32 v64, v64, v67, v70")
        a("v_or_b32 v64, v64, v73")
        a("v_and_b32 v64, 0xffff, v64")
        a("v_cmp_ne_u32 vcc, 0, v64")
        for j in range(6): a(f"v_perm_b32 v{44+j}, v{45+2*j}, v{44+2*j}, s73")
        a("s_cbranch_vccz L_h_ok")
        fallback("L_h_poll")
        L("L_h_ok")
        a("ds_write_b64 v13, v[44:45]")
        a("ds_write_b64 v13, v[46:47] offset:1536")
        a("ds_write_b64 v26, v[48:49]")
        a("s_waitcnt lgkmcnt(0)")
    L("L_b")
    a("s_barrier")
    if stamps:
        a("s_barrier")
        a(f"s_branch {END}")
    else:
        a("s_endpgm")

    L("L_final")
    if pf:
        a("s_cmp_eq_u32 s58, 3")
        a("s_cbranch_scc1 L_nopf2")
        a("buffer_load_dword v61, v25, s[24:27], s99 offen")
        L("L_nopf2")
    a("buffer_load_dword v62, v24, s[28:31], s98 offen sc1")
    a("buffer_load_ushort v23, v22, s[32:35], s97 offen")
    L("L_rs_poll")
    a("buffer_load_dwordx4 v[24:27], v21, s[28:31], s96 offen sc1")
    a("s_waitcnt vmcnt(0)")
    for j in range(4): a(f"v_xor_b32 v{28+j}, s{44+j}, v{24+j}")
    a("v_and_b32 v28, 0xffff, v28")
    a("v_or3_b32 v28, v28, v29, v30")
    a("v_or_b32 v28, v28, v31")
    a("v_cmp_ne_u32 vcc, 0, v28")
    a("s_cbranch_vccz L_rs_ok")
    fallback("L_rs_poll")
    L("L_rs_ok")
    a("v_and_b32 v24, 0xffff0000, v24")
    a("v_lshlrev_b32 v23, 16, v23")
    if not merge: a("s_barrier")
    a("s_barrier")
    a("s_barrier")
    L("L_y_poll")
    a("buffer_load_dwordx4 v[44:47], v12, s[28:31], s98 offen sc1")
    a("buffer_load_dwordx4 v[48:51], v12, s[28:31], s98 offen offset:1024 sc1")
    check8("L_y_ok")
    fallback("L_y_poll")
    L("L_y_ok")
    stamp(5)
    for j in range(4): a(f"v_add_f32 v{44+j}, v{44+j}, v{48+j}")
    o.extend(redscatter(44))
    a("s_nop 1")
    a("v_add_f32_dpp v44, v44, v44 row_ror:8 row_mask:0xf bank_mask:0xf")
    a("v_cvt_pk_bf16_f32 v44, v44, v44")
    a("v_and_b32 v44, 0xffff0000, v44")
    a("v_mul_f32 v44, v44, v24")
    a("v_cvt_pk_bf16_f32 v44, v44, v44")
    a("v_and_b32 v44, 0xffff0000, v44")
    a("v_fma_f32 v44, v23, 0, v44")
    a("v_add_f32 v44, v23, v44")
    a("v_cvt_pk_bf16_f32 v44, v44, v44")
    a("s_mov_b32 exec_lo, 0x00ff00ff")
    a("s_mov_b32 exec_hi, 0x00ff00ff")
    a("buffer_store_short v44, v22, s[36:39], s97 offen" + (" sc1" if outsc1 else ""))
    stamp(6)
    a("s_cmp_lg_u32 s2, 0")
    a(f"s_cbranch_scc1 {END}")
    for j in range(4): a(f"v_mov_b32 v{28+j}, s{44+j}")
    a("v_mov_b32 v32, 0")
    a("s_mov_b64 exec, 1")
    a("buffer_store_dwordx4 v[28:31], v32, s[28:31], 0 offen sc1")
    a(f"s_branch {END}")

    L("L_router")
    a("v_mov_b32 v36, 0")
    for j in range(8):
        a(f"v_dot2_f32_bf16 v36, v{64+j}, v{72+j}, v36")
    for ctl in ["quad_perm:[1,0,3,2]", "quad_perm:[2,3,0,1]", "row_half_mirror", "row_mirror"]:
        a("s_nop 2")
        a(f"v_add_f32_dpp v36, v36, v36 {ctl} row_mask:0xf bank_mask:0xf")
    a("v_mov_b32 v37, v36")
    a("s_nop 1")
    a("v_permlane16_swap_b32 v36, v37")
    a("v_add_f32 v36, v36, v37")
    a("v_mov_b32 v37, v36")
    a("s_nop 1")
    a("v_permlane32_swap_b32 v36, v37")
    a("v_add_f32 v36, v36, v37")
    a("v_cvt_pk_bf16_f32 v36, v36, v36")
    a("v_and_b32 v36, 0xffff0000, v36")
    a("v_mul_f32 v36, 0xbfb8aa3b, v36")
    a("v_exp_f32 v36, v36")
    a("s_nop 0")
    a("v_add_f32 v36, 1.0, v36")
    a("v_rcp_f32 v36, v36")
    a("s_and_b32 s64, s44, 0xffff")
    a("v_cvt_pk_bf16_f32 v36, v36, v36")
    a("v_lshl_or_b32 v36, v36, 16, s64")
    for j in range(1, 4): a(f"v_mov_b32 v{36+j}, s{44+j}")
    a("s_barrier")
    a("s_waitcnt vmcnt(3)")
    a("s_barrier")
    a("s_waitcnt vmcnt(1)")
    a("s_barrier")
    a("s_waitcnt vmcnt(0)")
    a("s_barrier")
    a("s_mov_b64 exec, 0xff")
    a("buffer_store_dwordx4 v[36:39], v12, s[28:31], s62 offen")
    a("s_mov_b64 exec, -1")
    a("s_branch L_pub")

    if probe >= 0:
        L("L_stamp")
        a("s_waitcnt lgkmcnt(0)")
        a(f"s_sub_u32 s90, s{76+2*probe}, s76")
        a(f"s_cmp_eq_u32 s{76+2*probe}, 0")
        a("s_cselect_b32 s90, 0, s90")
        if prole:
            a("s_cmp_eq_u32 s58, 3")
            a("s_cselect_b32 s90, 0, s90" if prole == 1 else "s_cselect_b32 s90, s90, 0")
        a("s_lshl_b32 s90, s90, 2")
        a("s_add_u32 s90, s90, 1500")
        a("s_min_u32 s90, s90, 100000")
        L("L_spin")
        a("s_memrealtime s[92:93]")
        a("s_waitcnt lgkmcnt(0)")
        a("s_sub_u32 s92, s92, s76")
        a("s_cmp_lt_u32 s92, s90")
        a("s_cbranch_scc1 L_spin")
    elif stamps:
        L("L_stamp")
        a("s_mov_b64 exec, -1")
        a("s_waitcnt lgkmcnt(0)")
        L("L_spin")
        a("s_sleep 8")
        a("s_memrealtime s[92:93]")
        a("s_waitcnt lgkmcnt(0)")
        a("s_sub_u32 s92, s92, s76")
        a("s_cmp_lt_u32 s92, 1200")
        a("s_cbranch_scc1 L_spin")
        a("s_add_u32 s40, s28, 0x8000000"); a("s_addc_u32 s41, s29, 0")
        a("s_mov_b32 s42, 0x100000"); a("s_mov_b32 s43, 0x20000")
        a("s_lshl3_add_u32 s90, s2, s3"); a("s_lshl_b32 s90, s90, 6")
        for j in range(14): a(f"v_mov_b32 v{100+j}, s{76+j}")
        a("v_mov_b32 v114, 0x54414D50"); a("v_mov_b32 v115, 0x53"); a("v_mov_b32 v116, 0")
        a("s_mov_b64 exec, 1")
        for j in range(4): a(f"buffer_store_dwordx4 v[{100+4*j}:{103+4*j}], v116, s[40:43], s90 offen offset:{16*j}")
    L("L_end")
    a("s_endpgm")
    return HEADER.format(kn=KN, lds=LDS) + "\n".join(o) + FOOTER.format(kn=KN, vgpr=160).replace('sgpr 96', 'sgpr 102')

if __name__ == "__main__":
    out = sys.argv[1]
    kw = {}
    for arg in sys.argv[2:]:
        k, v = arg.split("=")
        kw[k] = int(v)
    open(out, "w").write(gen(**kw))
```

```python
import sys

KN = "standalone__moe_arch_mod__decode_kernel"
HEADER = """; Kernarg layout for this problem (64 bytes, ptrs only, base s[0:1]):
;
;
; @launch grid=(256,1,1) block=(512,1,1) lds={lds}
.amdgcn_target "amdgcn-amd-amdhsa--gfx950"
.text
.globl {kn}
.p2align 8
.type {kn},@function
{kn}:
"""
FOOTER = """
.section .rodata,"a"
.p2align 6
.amdhsa_kernel {kn}
  .amdhsa_next_free_vgpr 160
  .amdhsa_next_free_sgpr 102
  .amdhsa_accum_offset 160
  .amdhsa_group_segment_fixed_size 0
  .amdhsa_kernarg_size 64
  .amdhsa_user_sgpr_count 2
  .amdhsa_user_sgpr_kernarg_segment_ptr 1
  .amdhsa_system_sgpr_workgroup_id_x 1
  .amdhsa_float_denorm_mode_32 3
.end_amdhsa_kernel
"""
WS_RS, WS_H, WS_PART, WS_P, WS_SIZE = 0x1000, 0x10000, 0x40000, 0x200000, 0x400000
L_T, L_X, L_H, LDS = 0x8000, 0x18000, 0x1A000, 0x1B000
CJ = [0x2B5, 0x13F, 0x3D1, 0x088]
XV, WV = 64, 128

def gen(stamps=0, w3=1, wh=1, wr=0, pa=0, sa=0, pt=1, rm=0, db=1, h7=1, rdb=1, hy=1, bb=-1, tl=1, dbg=0, xb=0, tf=0, notouch=0, probe=-1, neg=0, al=1, hs=2, noplain=0, thr=0, thc=2, fs=0, w4=1, ms=0, tb=8, limit=22, wb=31, forceremote=0):
    if probe >= 0: stamps = 1
    o = []
    def a(s, c=None): o.append("    " + s + (f"    ; {c}" if c else ""))
    def L(s): o.append(s + ":")
    def C(s): o.append("    ; " + s)
    TM = (1 << tb) - 1
    TF = [' sc1', '', ' nt', ' sc0 sc1'][tf]
    assert not (rm and h7) and pa == 0 and sa == 0 and pt == 1 and tl == 1 and hy == 1 and h7 == 1
    def stamp(k):
        if stamps: a(f"s_memrealtime s[{76+2*k}:{77+2*k}]")
    def fallback(lbl, count=True, extra=None):
        if count: a("s_add_u32 s75, s75, 1")
        a(f"s_and_b32 s74, s75, {wb}")
        a(f"s_cbranch_scc1 {lbl}")
        if extra: a(*extra)
        a("buffer_wbl2 sc1", "long wait: make this XCD's hand-offs visible to every other XCD")
        a(f"s_cmp_lt_u32 s75, {1 << limit}")
        a(f"s_cbranch_scc1 {lbl}")
        a("s_endpgm")
    def tr(n, addr, off):
        a(f"ds_read_b64_tr_b16 v[{WV+4*n}:{WV+1+4*n}], v{addr} offset:{off}")
        a(f"ds_read_b64_tr_b16 v[{WV+2+4*n}:{WV+3+4*n}], v{addr} offset:{off + 2048}")
    def p1(slots):
        for n, sl in enumerate(slots): tr(n, 6, sl*4096)
        nk = len(slots)
        for n, sl in enumerate(slots):
            a(f"s_waitcnt lgkmcnt({2*(nk-1-n)})")
            a(f"v_mfma_f32_16x16x32_bf16 v[40:43], v[{XV+4*sl}:{XV+3+4*sl}], v[{WV+4*n}:{WV+3+4*n}], v[40:43]")
    def publish(voff, sbase, t3, t0=44):
        a("s_mov_b32 exec_hi, 0")
        a("s_nop 6")
        for j in range(4): a(f"v_add_u32 v{40+j}, {1 << (tb-1)}, v{40+j}")
        for j in range(4): a(f"v_bfi_b32 v{40+j}, v15, s{t0+j if j < 3 else t3}, v{40+j}")
        a(f"buffer_store_dwordx4 v[40:43], v{voff}, s[28:31], s{sbase} offen")
        a("s_mov_b32 exec_hi, -1")
    def wd_loads():
        a("s_lshl_b32 m0, s3, 12")
        for i, rows in enumerate([0, 16, 4, 20]):
            a(f"s_add_u32 s68, s70, {rows*2048 - i*1024}")
            a(f"buffer_load_dwordx4 v8, s[24:27], s68 offen offset:{i*1024} nt lds")
    def or8(ok):
        a("v_or3_b32 v52, v44, v45, v46"); a("v_or3_b32 v53, v47, v48, v49"); a("v_or3_b32 v52, v52, v50, v51")
        a("v_or_b32 v52, v52, v53"); a("v_and_b32 v52, v52, v15")
        a("v_cmp_ne_u32 vcc, 0, v52"); a(f"s_cbranch_vccz {ok}")
    def check8(ok, x3, t0=48):
        a("s_waitcnt vmcnt(0)")
        for j in range(8): a(f"v_xor_b32 v{44+j}, s{t0+(j&3) if (j&3) < 3 else x3}, v{44+j}")
        or8(ok)

    END = "L_stamp" if stamps else "L_end"
    if stamps:
        for j in range(76, 90): a(f"s_mov_b32 s{j}, 0")
    stamp(0)
    a("s_load_dwordx16 s[4:19], s[0:1], 0")
    a("s_cmp_ge_u32 s2, 256")
    a("s_cbranch_scc1 L_end")
    a("v_lshrrev_b32 v2, 6, v0")
    a("v_and_b32 v1, 63, v0", "lane")
    a("v_readfirstlane_b32 s3, v2", "wave")
    a("s_getpc_b64 s[66:67]")
    L("L_pc")
    a("v_lshlrev_b32 v54, 7, v1")
    a("s_cmp_lg_u32 s3, 7")
    a("s_cbranch_scc1 L_nopf")
    a("v_min_u32 v54, L_end-L_pc, v54")
    a("global_load_dword v60, v54, s[66:67]", "pull the code into L2 while the kernel arguments arrive")
    L("L_nopf")
    a("s_and_b32 s56, s2, 7", "m")
    if fs:
        a(f"s_lshl_b32 s57, s56, 2")
        a(f"s_lshr_b32 s56, {fs}, s57")
        a("s_and_b32 s56, s56, 7", "FFN column group of this XCD")
    a("s_bfe_u32 s57, s2, 0x20003", "kq")
    a("s_bfe_u32 s58, s2, 0x20005", "cbx")
    a("s_lshr_b32 s59, s2, 7", "mat")
    a("s_add_u32 s63, s56, 3")
    a("s_and_b32 s63, s63, 7")
    a("s_cmp_eq_u32 s63, 7")
    a("s_cselect_b32 s63, 3, s63", "js: the line of the group that is split four ways")
    a("s_mul_i32 s61, s56, 7")
    a("s_bfe_u32 s62, s2, 0x30004")
    a("s_cmp_ge_u32 s62, s63")
    a("s_addc_u32 s62, s62, 0")
    a("s_and_b32 s65, s57, 1")
    a("s_lshl_b32 s65, s65, 1")
    a("s_cmp_eq_u32 s58, 3")
    a("s_cselect_b32 s62, s63, s62")
    a("s_cselect_b32 s65, s57, s65", "first k-block / 8")
    a("s_cselect_b32 s64, 4, 8", "k-blocks per half")
    a("s_cselect_b32 s74, 16, 0", "LDS KBs skipped at the head of each half")
    a("s_add_u32 s62, s62, s61", "128-byte line within a weight row")
    a("v_lshrrev_b32 v17, 3, v1")
    a("v_and_b32 v17, 6, v17")
    a("v_xor_b32 v17, v17, v1")
    a("v_and_b32 v17, 7, v17")
    a("v_lshlrev_b32 v17, 4, v17", "swizzled 16-byte piece within a line")
    a("v_bfe_u32 v16, v1, 3, 2")
    a("v_lshrrev_b32 v9, 5, v1")
    a("v_lshl_add_u32 v16, v9, 3, v16", "row within the 8-row piece")
    a("v_mul_u32_u24 v4, 7168, v16")
    a("v_add_u32 v4, v4, v17", "gate/up voffset")
    a("v_lshl_add_u32 v8, v16, 11, v17", "w_down voffset")
    a("v_and_b32 v18, 7, v1")
    a("v_lshlrev_b32 v18, 4, v18")
    a("v_bfe_u32 v10, v1, 3, 1")
    a("v_lshl_add_u32 v10, v10, 11, v18")
    a("v_bfe_u32 v11, v1, 4, 1")
    a("v_lshl_add_u32 v10, v11, 7, v10", "phase-1 partial store offset")
    a("v_lshlrev_b32 v12, 4, v1")
    a("s_lshr_b32 s66, s3, 2")
    if ms:
        if ms == 1: a("s_mov_b32 s17, s59" if False else "s_mov_b32 s97, s59")
        else:
            a("s_bfe_u32 s97, s2, 0x10004")
            if ms == 3: a("s_xor_b32 s97, s97, s59")
        a("s_xor_b32 s67, s66, s97", "some workgroups walk their two K halves in the other order")
        a("s_mul_i32 s67, s67, s64")
    else:
        a("s_mul_i32 s67, s66, s64")
    a("s_lshl3_add_u32 s67, s65, s67")
    a("s_lshl_b32 s67, s67, 3")
    a("s_and_b32 s68, s3, 1")
    a("s_lshl2_add_u32 s67, s68, s67")
    a("s_bfe_u32 s68, s3, 0x10001")
    a("s_add_u32 s67, s67, s68")
    a(f"s_mul_i32 s67, s67, {4*7168}")
    a("s_lshl_b32 s68, s62, 7")
    a("s_add_u32 s92, s67, s68", "first piece of this wave")
    a("s_and_b32 s68, s3, 3")
    a("s_lshl_b32 s66, s66, 5")
    a("s_add_u32 s66, s66, s68")
    a("s_add_u32 s66, s66, s74")
    a("s_lshl_b32 s66, s66, 10")
    a(f"s_add_u32 s90, s66, {L_T}")
    a(f"s_mov_b32 s93, {32*7168}")
    a("s_mov_b32 s22, 7340032"); a("s_mov_b32 s23, 0x20000")
    a("s_mov_b64 s[26:27], s[22:23]")
    a(f"s_mov_b32 s30, {WS_SIZE}"); a("s_mov_b32 s31, s23")
    a("s_movk_i32 s34, 16384"); a("s_mov_b32 s35, s23")
    a("s_mov_b64 s[38:39], s[34:35]")
    a("s_movk_i32 s42, 2048"); a("s_mov_b32 s43, s23")
    a("s_cmp_ge_u32 s3, 4")
    a("s_cbranch_scc1 L_addr")
    a("s_cmp_eq_u32 s59, 0")
    a("s_mov_b32 m0, s90")
    a("s_waitcnt lgkmcnt(0)")
    L("L_issue")
    a("s_cselect_b64 s[20:21], s[8:9], s[10:11]")
    a("s_cmp_eq_u32 s58, 3")
    a("s_cbranch_scc1 L_short")
    for kb in range(8):
        if kb == 4: L("L_short")
        if thr >> kb & 1:
            a(f"s_cmp_lt_u32 s58, {thc}")
            a(f"s_cbranch_scc1 L_thr{kb}")
            a("s_waitcnt vmcnt(0)")
            L(f"L_thr{kb}")
        if kb == bb:
            a("s_cmp_lt_u32 s3, 4")
            a("s_cbranch_scc1 L_bb")
            a(f"s_waitcnt vmcnt({bb})")
            L("L_bb")
        a("buffer_load_dwordx4 v4, s[20:23], s92 offen nt lds")
        if kb < 7:
            a("s_addk_i32 m0, 0x1000")
            a("s_add_u32 s92, s92, s93")
    a("s_cmp_ge_u32 s3, 4")
    a("s_cbranch_scc1 L_tags")
    L("L_addr")
    C("partial slot: (line*4 + t)*4096 + [cbx = 3: (kq>>1)*1024] + mat*512 + (kq&1)*256")
    a("s_lshl2_add_u32 s60, s59, s57", "q = 4*mat + kq")
    a("s_lshl2_add_u32 s69, s62, s68")
    a("s_lshr_b32 s52, s57, 1")
    a("s_cmp_eq_u32 s58, 3")
    a("s_cselect_b32 s52, s52, 0")
    a("s_lshl2_add_u32 s69, s69, s52")
    a("s_lshl1_add_u32 s69, s69, s59")
    a("s_and_b32 s52, s57, 1")
    a("s_lshl1_add_u32 s69, s69, s52")
    a("s_lshl_b32 s69, s69, 8")
    a(f"s_add_u32 s69, s69, {WS_PART}")
    a("s_lshl_b32 s96, s56, 10")
    a(f"s_add_u32 s96, s96, {WS_RS}")
    C("phase-2 tile: row block u = 8*mat + 4*(cbx&1) + kq, column line cb16 = 2*blk + (cbx < 2)")
    a("s_bfe_u32 s53, s2, 0x30003")
    a("s_lshl3_add_u32 s53, s59, s53")
    a("s_mul_i32 s55, s53, 7")
    a("s_add_u32 s55, s55, s3")
    a("s_lshl_b32 s70, s55, 16")
    a("s_and_b32 s52, s2, 7")
    a("s_cmp_eq_u32 s52, 0")
    a("s_cselect_b32 s101, 5, s52")
    a("s_cmp_eq_u32 s52, 5")
    a("s_cselect_b32 s101, 0, s101")
    a("s_cmp_lt_u32 s58, 2")
    a("s_addc_u32 s54, s101, s101")
    a("s_lshl_b32 s72, s62, 7")
    a(f"s_add_u32 s98, s72, {0x8000}", "'partials consumed' record of this workgroup's own line")
    a("s_cmp_ge_u32 s3, 4")
    a("s_cbranch_scc0 L_rest")
    C("waves 4-7: stage x (batches 2t, 2t+1), first touch of the lines this workgroup publishes into")
    a("s_lshl_b32 s74, s74, 4")
    a("s_lshl_b32 s64, s74, 15")
    a("s_lshl_b32 s65, s65, 9")
    a("s_lshl_b32 s72, s68, 12")
    a("s_add_u32 s65, s65, s72")
    a("s_lshr_b32 s72, s72, 1")
    a(f"s_add_u32 m0, s72, {L_X}")
    a("s_lshl_b32 s72, s68, 3")
    if ms:
        a("s_lshl_b32 s52, s97, 5")
        a("s_add_u32 s72, s72, s52")
        a("v_xor_b32 v9, s97, v9")
    a("v_xor_b32 v6, s72, v1")
    a("v_add_u32 v2, 1, v9")
    a("v_mul_u32_u24 v2, s74, v2")
    a("v_bfe_u32 v7, v6, 4, 1")
    a("v_xor_b32 v7, 1, v7")
    a("v_mul_u32_u24 v7, s64, v7")
    a("v_sub_u32 v2, v7, v2")
    a("v_lshl_add_u32 v13, v6, 4, v2")
    a("v_xor_b32 v6, 4, v6")
    a("v_lshl_add_u32 v14, v6, 4, v2")
    a("s_add_u32 s74, s65, 1024")
    a("s_waitcnt lgkmcnt(0)")
    a("s_mov_b64 s[32:33], s[4:5]"); a("s_mov_b64 s[28:29], s[18:19]"); a("s_mov_b64 s[40:41], s[6:7]")
    a("buffer_load_dwordx4 v13, s[32:35], s65 offen lds")
    a("buffer_load_dwordx4 v14, s[32:35], s74 offen offset:1024 lds")
    a("buffer_load_dword v61, v10, " + ("s[32:35], 0" if notouch & 1 else "s[28:31], s69") + " offen" + TF)
    a("s_lshl2_add_u32 s52, s3, s58")
    a("s_cmp_lg_u32 s52, 31")
    a("s_cbranch_scc1 L_rest")
    C("router operands: wave 7 of a cbx = 3 workgroup scores batch q")
    a("s_lshl_b32 s72, s60, 11")
    a("s_lshl_b32 s62, s60, 7")
    a("s_add_u32 s62, s62, s96")
    a("buffer_load_dwordx4 v[64:67], v12, s[32:35], s72 offen")
    a("buffer_load_dwordx4 v[68:71], v12, s[32:35], s72 offen offset:1024")
    a("buffer_load_dwordx4 v[72:75], v12, s[40:43], 0 offen")
    a("buffer_load_dwordx4 v[76:79], v12, s[40:43], 0 offen offset:1024")
    a("buffer_load_dword v62, v18, s[28:31], s62 offen" + TF)
    a("s_add_u32 s72, s61, s60")
    a("s_lshl_b32 s72, s72, 7")
    a(f"s_add_u32 s72, s72, {0x8000}")
    a("buffer_load_dword v63, v18, s[28:31], s72 offen" + TF)
    L("L_rest")
    a("s_load_dwordx4 s[44:47], s[18:19], 0", "epoch record")
    a("s_mov_b64 s[24:25], s[12:13]"); a("s_mov_b64 s[32:33], s[4:5]"); a("s_mov_b64 s[28:29], s[18:19]"); a("s_mov_b64 s[36:37], s[14:15]")
    a("s_lshl_b32 s52, s54, 7")
    a("s_add_u32 s70, s70, s52", "w_down k-block of this wave")
    a("s_and_b32 s100, s54, 7")
    a("s_cmp_eq_u32 s100, 3")
    a(f"s_cselect_b32 s100, {7-w3}, 7")
    a("s_cmp_eq_u32 s58, 3")
    a(f"s_cselect_b32 s100, {7-wh}, s100", "k-blocks from s100 on are queued before the publish")
    if w4:
        a("s_cmp_eq_u32 s56, 4")
        a("s_cselect_b32 s100, 7, s100")
    if wr:
        a("s_cmp_eq_u32 s58, 2")
        a(f"s_cselect_b32 s100, {7-wr}, s100")
    a("s_mov_b32 s75, 0")
    a("s_mov_b32 s73, 0x07060302")
    a(f"v_mov_b32 v15, {TM}")
    a("v_lshrrev_b32 v19, 4, v1")
    a("v_bfe_u32 v9, v1, 3, 2")
    a("v_xor_b32 v9, s3, v9")
    a("v_and_b32 v9, 3, v9")
    a("v_lshlrev_b32 v9, 5, v9")
    a("v_lshrrev_b32 v6, 2, v1")
    a("v_lshl_add_u32 v9, v6, 7, v9")
    a("v_and_b32 v7, 3, v1")
    a("v_lshl_add_u32 v9, v7, 3, v9", "transposing-read address (w_down image)")
    a(f"v_add_u32 v6, {L_T}, v9", "same for the gate/up image")
    a("v_bfe_u32 v54, v1, 2, 1")
    a("v_lshl_add_u32 v14, v7, 1, v54")
    a("v_lshlrev_b32 v14, 4, v14")
    a("v_lshl_add_u32 v14, v19, 7, v14")
    a(f"v_add_u32 v14, {L_H}, v14", "h operand address (rows kept in the order 2*(b&3) + (b>>2))")
    a("v_and_b32 v7, 7, v1")
    a("v_mul_u32_u24 v7, 1088, v7")
    a("v_lshl_add_u32 v7, v19, 4, v7")
    a(f"v_add_u32 v7, {L_X}, v7", "x operand address")
    a("v_lshlrev_b32 v13, 3, v0")
    a(f"v_add_u32 v13, {L_H}, v13")
    a("s_lshl_b32 s71, s55, 10")
    a(f"s_add_u32 s71, s71, {WS_H}")
    C("phase-2 partials reuse the producer's phase-1 lines: gather address of source r = (cbx&2)*4 + lane/8")
    a("s_and_b32 s64, s58, 2")
    a("s_lshl_b32 s64, s64, 2")
    a("v_lshrrev_b32 v11, 3, v1")
    a("v_add_u32 v11, s64, v11")
    a("v_lshrrev_b32 v26, 1, v11")
    a("v_cmp_le_u32 vcc, s63, v26")
    a("v_and_b32 v27, 1, v26")
    a("v_lshlrev_b32 v27, 10, v27")
    a("v_addc_co_u32 v26, vcc, 0, v26, vcc")
    a("v_lshlrev_b32 v26, 14, v26")
    a("s_lshl_b32 s64, s63, 14")
    a("v_add_u32 v27, s64, v27")
    a("v_cmp_lt_u32 vcc, 11, v11")
    a("v_and_b32 v11, 1, v11")
    a("v_lshl_add_u32 v11, v11, 8, v18")
    a("v_cndmask_b32 v26, v26, v27, vcc")
    a("v_add_u32 v11, v11, v26")
    a("s_lshr_b32 s72, s53, 2")
    a("s_lshl2_add_u32 s72, s61, s72")
    a("s_and_b32 s64, s53, 1")
    a("s_lshl1_add_u32 s72, s72, s64")
    a("s_lshl_b32 s72, s72, 4")
    a("s_bfe_u32 s64, s53, 0x10001")
    a("s_add_u32 s72, s72, s64")
    a("s_lshl_b32 s72, s72, 7")
    a(f"s_add_u32 s72, s72, {WS_PART}", "7m*16384 + nb*4096 + c*2048 + q*128")
    a("s_bfe_u32 s99, s53, 0x10001")
    a("s_lshl_b32 s99, s99, 2")
    a("v_add_u32 v20, s99, v19", "batch of this lane's output")
    a("v_lshlrev_b32 v21, 7, v20")
    a("s_lshr_b32 s97, s53, 2")
    a("s_lshl2_add_u32 s97, s54, s97")
    a("s_and_b32 s99, s53, 1")
    a("s_lshl1_add_u32 s97, s97, s99")
    a("s_lshl_b32 s97, s97, 4")
    a("v_lshrrev_b32 v22, 3, v18")
    a("v_lshl_add_u32 v22, v20, 11, v22", "x / out voffset")
    C("L2 prefetch target: rows 56*w + lane of the w_down tile of workgroup (mat, 2, kq)")
    a("s_mul_i32 s99, s3, 24*2048")
    a("s_add_u32 s99, s99, s70")
    a(f"s_sub_u32 s99, s99, {4*224*2048}")
    if tl:
        a("s_andn2_b32 s64, s53, 4")
        a("s_lshl2_add_u32 s64, s64, s58")
        a("s_add_u32 s64, s64, 2")
        a("s_mul_i32 s64, s64, 56*2048")
        a("s_lshl_b32 s68, s101, 8")
        a("s_add_u32 s64, s64, s68")
        a("s_cmp_lt_u32 s58, 2")
        a("s_cselect_b32 s99, s64, s99")
        a("s_cselect_b32 s91, s3, 0")
        if hs == 3:
            a("s_cmp_eq_u32 s58, 0")
            a("s_cselect_b32 s91, 0, s91")
        if hs == 4: a("s_mov_b32 s91, 0")
    a("v_lshlrev_b32 v25, 11, v1")
    C("reducer: column group 8*(7m + q) + w")
    a("s_add_u32 s67, s61, s60")
    a("s_lshl3_add_u32 s67, s67, s3")
    a("s_lshl_b32 s65, s67, 4")
    a(f"s_add_u32 s65, s65, {0x8000}")
    a("s_lshl_b32 s66, s67, 11")
    a(f"s_add_u32 s66, s66, {WS_PART}")
    a("s_lshl_b32 s67, s67, 8")
    a(f"s_add_u32 s67, s67, {WS_H}")
    a("v_lshlrev_b32 v56, 2, v1")
    a("s_getreg_b32 s94, hwreg(HW_REG_XCC_ID, 0, 3)")
    if forceremote: a("s_bfe_u32 s94, s2, 0x30003")
    a("s_mov_b32 s95, 0")
    a("s_cmp_ge_u32 s3, 4")
    a("s_cbranch_scc0 L_tags")
    a("s_cmp_eq_u32 s59, 0")
    a("s_mov_b32 m0, s90")
    a("s_branch L_issue")
    L("L_tags")
    a("s_waitcnt lgkmcnt(0)")
    for j in range(4): a(f"s_add_u32 s{44+j}, s{44+j}, {CJ[j]}", "tags of this launch" if j == 0 else None)
    for j in range(4): a(f"s_and_b32 s{48+j}, s{44+j}, {TM}")
    for j in range(4): a(f"s_add_u32 s{4+j}, s{44+j}, {CJ[j]}", "tags of the phase-2 partials = next epoch record" if j == 0 else None)
    for j in range(4): a(f"s_and_b32 s{8+j}, s{4+j}, {TM}")
    a("s_xor_b32 s94, s94, s11", "word 3 of a phase-2 partial also names the producer's XCD")
    a("v_and_b32 v54, 3, v1")
    a("v_mov_b32 v55, s44")
    for j in range(1, 4):
        a(f"v_mov_b32 v57, s{44+j}")
        a(f"v_cmp_eq_u32 vcc, {j}, v54")
        a("s_nop 1")
        a("v_cndmask_b32 v55, v55, v57, vcc")
    a("v_mov_b32 v58, v55")
    a("v_and_b32 v55, 0xffff, v55", "per-lane h tag")
    for j in range(4): a(f"v_mov_b32 v{40+j}, 0")

    C("---------------- phase 1: waves 4-7 pace the stages, waves 0-3 multiply")
    a("s_cmp_ge_u32 s3, 4")
    a("s_cbranch_scc0 L_comp")
    a("s_lshl2_add_u32 s52, s3, s58")
    a("s_cmp_eq_u32 s52, 31")
    a("s_cbranch_scc1 L_router")
    a("s_waitcnt vmcnt(8)")
    a("s_cmp_lg_u32 s58, 3")
    a("s_cbranch_scc1 L_s0")
    if sa:
        a("s_cmp_eq_u32 s3, 7")
        a("s_cbranch_scc1 L_r7")
        a("s_cmp_lt_u32 s3, s100")
        a("s_cbranch_scc1 L_r7")
        wd_loads()
        a("s_waitcnt vmcnt(8)")
        a("s_barrier")
        a("s_waitcnt vmcnt(7)")
        a("s_branch L_s0x")
        L("L_r7")
    a("s_waitcnt vmcnt(4)")
    L("L_s0")
    if xb: a("s_barrier")
    a("s_barrier")
    a("s_waitcnt vmcnt(3)")
    a("s_cmp_lt_u32 s3, s100")
    a("s_cbranch_scc1 L_s1")
    a("s_cmp_eq_u32 s3, 7")
    a("s_cbranch_scc1 L_s1")
    wd_loads()
    L("L_s0x")
    a("s_barrier")
    a("s_waitcnt vmcnt(5)")
    a("s_barrier")
    a("s_waitcnt vmcnt(4)")
    a("s_barrier")
    stamp(2)
    a("s_branch L_pub")
    L("L_s1")
    if dbg == 1: stamp(4)
    a("s_barrier")
    a("s_waitcnt vmcnt(1)")
    if dbg == 1: stamp(5)
    a("s_barrier")
    a("s_waitcnt vmcnt(0)")
    if dbg == 1: stamp(6)
    a("s_barrier")
    stamp(2)
    a("s_branch L_pub")
    L("L_comp")
    def xr(slots):
        for sl in slots:
            if sl == 0: a(f"ds_read_b128 v[{XV}:{XV+3}], v7")
            else:
                a(f"v_xor_b32 v18, {sl << 6}, v7")
                a(f"ds_read_b128 v[{XV+4*sl}:{XV+3+4*sl}], v18")
    if not xb: a("s_waitcnt vmcnt(0)")
    a("s_cmp_eq_u32 s58, 3")
    a("s_barrier")
    if dbg == 1: stamp(6)
    xr([4, 5, 6, 7, 12, 13, 14, 15])
    if xb:
        a("s_cbranch_scc1 L_shortx")
        a("s_waitcnt lgkmcnt(4)")
        xr([0, 1, 2, 3, 8, 9, 10, 11])
        L("L_shortx")
        a("s_waitcnt vmcnt(0)")
        a("s_barrier")
        a("s_cbranch_scc1 L_short0")
    else:
        a("s_cbranch_scc1 L_short0")
        a("s_waitcnt lgkmcnt(4)")
        xr([0, 1, 2, 3, 8, 9, 10, 11])
        a("s_waitcnt lgkmcnt(4)")
    p1([0, 1, 2, 3])
    L("L_short0")
    a("s_waitcnt lgkmcnt(4)")
    p1([4, 5, 6, 7])
    a("s_barrier")
    a("s_cbranch_scc1 L_short1")
    p1([8, 9, 10, 11])
    L("L_short1")
    p1([12])
    a("s_barrier")
    p1([13, 14])
    a("s_barrier")
    stamp(2)
    p1([15])
    publish(10, 69, 47)
    L("L_pub")
    a("s_barrier", "the partials are queued ahead of the w_down loads")
    a("s_cmp_lt_u32 s58, 2")
    a("s_cbranch_scc1 L_defer")
    a("s_cmp_eq_u32 s60, 7")
    a("s_cbranch_scc1 L_defer")
    a("s_cmp_eq_u32 s58, 2")
    a("s_cbranch_scc1 L_red")
    a(f"s_cmp_ge_u32 s3, {hs}")
    a("s_cbranch_scc1 L_defer")
    a("buffer_load_dword v61, v25, s[24:27], s99 offen", "L2 prefetch for the paired reducer")
    a("s_branch L_defer")
    L("L_red")
    C("---------------- reducer: partials -> h")
    a("s_cmp_eq_u32 s60, s63")
    a("s_cbranch_scc1 L_r4_poll")
    if rdb:
        a("buffer_load_dwordx4 v[64:67], v12, s[28:31], s66 offen sc1")
        a("s_mov_b32 s52, 12")
        L("L_r2")
        for (cur, nxt) in ((64, 68), (68, 64)):
            a(f"buffer_load_dwordx4 v[{nxt}:{nxt+3}], v12, s[28:31], s66 offen sc1")
            a("s_waitcnt vmcnt(1)")
            for j in range(4): a(f"v_xor_b32 v{44+j}, s{48+j}, v{cur+j}")
            a("v_or3_b32 v52, v44, v45, v46")
            a("v_or_b32 v52, v52, v47")
            a("v_and_b32 v52, v52, v15")
            a("v_cmp_ne_u32 vcc, 0, v52")
            a("s_cbranch_vccz L_r_ok")
        a("s_sub_u32 s52, s52, 1")
        a("s_cbranch_scc0 L_r2")
    L("L_r_poll")
    a("buffer_load_dwordx4 v[44:47], v12, s[28:31], s66 offen sc1")
    a("s_waitcnt vmcnt(0)")
    for j in range(4): a(f"v_xor_b32 v{44+j}, s{48+j}, v{44+j}")
    a("v_or3_b32 v52, v44, v45, v46")
    a("v_or_b32 v52, v52, v47")
    a("v_and_b32 v52, v52, v15")
    a("v_cmp_ne_u32 vcc, 0, v52")
    a("s_cbranch_vccz L_r_ok")
    fallback("L_r_poll")
    L("L_r4_poll")
    a("buffer_load_dwordx4 v[44:47], v12, s[28:31], s66 offen sc1")
    a("buffer_load_dwordx4 v[48:51], v12, s[28:31], s66 offen offset:1024 sc1")
    check8("L_r4_ok", 51)
    fallback("L_r4_poll")
    L("L_r4_ok")
    for j in range(4): a(f"v_add_f32 v{44+j}, v{44+j}, v{48+j}")
    a("s_nop 0")
    L("L_r_ok")
    if dbg == 0: stamp(6)
    a("v_permlane16_swap_b32 v44, v45")
    a("v_permlane16_swap_b32 v46, v47")
    a("v_add_f32 v44, v44, v45")
    a("v_add_f32 v46, v46, v47")
    a("s_nop 1")
    a("v_permlane32_swap_b32 v44, v46", "v44 = x.Wg, v46 = x.Wu")
    a("v_cvt_pk_bf16_f32 v44, v44, v46")
    a("v_lshlrev_b32 v45, 16, v44")
    a("v_mul_f32 v46, 0xbfb8aa3b, v45")
    a("v_exp_f32 v46, v46")
    a("v_and_b32 v44, 0xffff0000, v44")
    a("v_add_f32 v46, 1.0, v46")
    a("v_rcp_f32 v46, v46")
    a("s_nop 0")
    a("v_mul_f32 v45, v45, v46", "silu")
    a("v_cvt_pk_bf16_f32 v45, v45, v45")
    a("v_and_b32 v45, 0xffff0000, v45")
    a("v_mul_f32 v45, v45, v44")
    a("v_cvt_pk_bf16_f32 v45, v45, v45")
    a("v_lshl_or_b32 v45, v45, 16, v55")
    a("buffer_store_dword v45, v56, s[28:31], s67 offen sc1")
    a("s_mov_b64 exec, 15")
    if not noplain: a("buffer_store_dword v58, v56, s[28:31], s65 offen")
    a("s_mov_b64 exec, -1")
    a("s_barrier")
    if rm:
        a("s_cmp_ge_u32 s3, 4")
        a("s_cbranch_scc1 L_defer")
        stamp(3)
        wd_loads()
        a("buffer_load_dwordx4 v[44:47], v12, s[28:31], s71 offen sc1")
        a("buffer_load_dwordx4 v[48:51], v12, s[28:31], s65 offen sc1")
        a("s_waitcnt vmcnt(2)")
        a("s_barrier")
        stamp(1)
        a("s_branch L_tr")

    C("---------------- phase 2")
    L("L_defer")
    stamp(3)
    a("s_cmp_eq_u32 s3, 7")
    a("s_cbranch_scc1 L_final")
    a("s_cmp_ge_u32 s3, s100")
    a("s_cbranch_scc1 L_p2")
    wd_loads()
    L("L_p2")
    if tl:
        a("s_cmp_lg_u32 s91, 6")
        a("s_cbranch_scc1 L_p2w")
        C("wave 6 of a cbx < 2 workgroup: touches queued behind the workgroup's own w_down pieces")
        a("buffer_load_dword v61, v25, s[24:27], s99 offen", "L2 prefetch for a reducer")
        a("s_waitcnt vmcnt(1)")
        a("s_branch L_p2b")
        L("L_p2w")
    a("s_waitcnt vmcnt(0)")
    L("L_p2b")
    a("s_barrier")
    stamp(1)
    if h7:
        a("buffer_load_dwordx4 v[44:47], v12, s[28:31], s71 offen sc1")
        a("s_cmp_ge_u32 s3, 4")
        a("s_cbranch_scc1 L_h_chk")
        for kb in range(7): tr(kb, 9, kb*4096)
        a("s_branch L_h_chk")
        L("L_h_poll")
        a("buffer_load_dwordx4 v[44:47], v12, s[28:31], s71 offen sc1")
        L("L_h_chk")
        a("s_waitcnt vmcnt(0)")
        a("v_perm_b32 v48, v45, v44, s73")
        a("v_perm_b32 v49, v47, v46, s73")
        a("ds_write_b64 v13, v[48:49]")
        for j in range(4): a(f"v_xor_b32 v{32+j}, s{44+j}, v{44+j}")
        a("v_or3_b32 v32, v32, v33, v34")
        a("v_or_b32 v32, v32, v35")
        a("v_and_b32 v32, 0xffff, v32")
        a("v_cmp_ne_u32 vcc, 0, v32")
        a("s_cbranch_vccz L_h_ok")
        fallback("L_h_poll")
        L("L_h_ok")
        a("s_cmp_ge_u32 s3, 4")
        a("s_waitcnt lgkmcnt(0)")
        a("s_barrier")
        a("s_cbranch_scc1 L_b")
    else:
        a("s_cmp_ge_u32 s3, 4")
        a("s_cbranch_scc1 L_b")
        a("buffer_load_dwordx4 v[44:47], v12, s[28:31], s71 offen sc1")
        a("buffer_load_dwordx4 v[48:51], v12, s[28:31], s65 offen sc1")
        L("L_tr")
        for kb in range(7): tr(kb, 9, kb*4096)
        a("s_branch L_h_chk")
        L("L_h_poll")
        a("buffer_load_dwordx4 v[44:47], v12, s[28:31], s71 offen sc1")
        a("buffer_load_dwordx4 v[48:51], v12, s[28:31], s65 offen sc1")
        L("L_h_chk")
        a("s_waitcnt vmcnt(0)")
        for j in range(8): a(f"v_xor_b32 v{32+j}, s{44+(j&3)}, v{44+j}")
        a("v_or3_b32 v32, v32, v33, v34"); a("v_or3_b32 v35, v35, v36, v37"); a("v_or3_b32 v32, v32, v38, v39")
        a("v_or_b32 v32, v32, v35")
        a("v_and_b32 v32, 0xffff, v32")
        a("v_cmp_ne_u32 vcc, 0, v32")
        for j in range(4): a(f"v_perm_b32 v{44+j}, v{45+2*j}, v{44+2*j}, s73")
        a("s_cbranch_vccz L_h_ok")
        fallback("L_h_poll")
        L("L_h_ok")
        a("ds_write_b64 v13, v[44:45]")
        a("ds_write_b64 v13, v[46:47] offset:2048")
        a("s_waitcnt lgkmcnt(0)")
        a("s_barrier")
    stamp(4)
    for kb in range(7):
        a(f"ds_read_b128 v[{XV+4*kb}:{XV+3+4*kb}], v14 offset:{kb*512}")
    for kb in range(7):
        a(f"s_waitcnt lgkmcnt({6-kb})")
        c = "0" if kb == 0 else "v[40:43]"
        a(f"v_mfma_f32_16x16x32_bf16 v[40:43], v[{XV+4*kb}:{XV+3+4*kb}], v[{WV+4*kb}:{WV+3+4*kb}], {c}")
    publish(10, 69, 94, 8)
    stamp(5)
    a("s_barrier")
    a("s_waitcnt vmcnt(0)")
    a(f"s_branch {END}" if stamps else "s_endpgm")
    L("L_b")
    if stamps:
        if not h7: a("s_barrier")
        a("s_barrier"); a(f"s_branch {END}")
    else:
        a("s_endpgm")

    C("---------------- final reduction (wave 7)")
    L("L_final")
    if not tl:
        if pt:
            a("s_cmp_ge_u32 s58, 2")
            a("s_cbranch_scc1 L_notouch")
            a("buffer_load_dword v63, v24, s[28:31], s98 offen sc1", "first touch of the inbox")
            if hy:
                a("s_andn2_b32 s64, s53, 4")
                a("s_lshl2_add_u32 s64, s64, s58")
                a("s_add_u32 s64, s64, 2")
                a("s_mul_i32 s64, s64, 56*2048")
                a("s_lshl_b32 s68, s101, 8")
                a("s_add_u32 s64, s64, s68")
                a("buffer_load_dword v61, v25, s[24:27], s64 offen")
            L("L_notouch")
    a("buffer_load_ushort v23, v22, s[32:35], s97 offen")
    L("L_rs_poll")
    a("buffer_load_dwordx4 v[24:27], v21, s[28:31], s96 offen sc1")
    a("s_waitcnt vmcnt(0)")
    for j in range(4): a(f"v_xor_b32 v{28+j}, s{44+j}, v{24+j}")
    a("v_and_b32 v28, 0xffff, v28")
    a("v_or3_b32 v28, v28, v29, v30")
    a("v_or_b32 v28, v28, v31")
    a("v_cmp_ne_u32 vcc, 0, v28")
    a("s_cbranch_vccz L_rs_ok")
    fallback("L_rs_poll", extra=("s_xor_b32 s96, s96, 0x4000", "alternate with the written-through copy"))
    L("L_rs_ok")
    a("v_and_b32 v24, 0xffff0000, v24", "sigmoid(r)")
    a("v_lshlrev_b32 v23, 16, v23", "x")
    a("s_barrier")
    C("the phase-1 lines may be overwritten once the h of this workgroup's own line exists")
    L("L_o_poll")
    a("buffer_load_dwordx4 v[44:47], v18, s[28:31], s98 offen sc1")
    a("s_waitcnt vmcnt(0)")
    for j in range(4): a(f"v_xor_b32 v{44+j}, s{44+j}, v{44+j}")
    a("v_or3_b32 v52, v44, v45, v46")
    a("v_or_b32 v52, v52, v47")
    a("v_cmp_ne_u32 vcc, 0, v52"); a("s_cbranch_vccz L_o_ok")
    a("s_add_u32 s75, s75, 1")
    a(f"s_cmp_lt_u32 s75, {wb+1}")
    a("s_cbranch_scc1 L_o_poll")
    a("s_branch L_o2")
    L("L_o_ok")
    a("s_barrier")
    a("s_barrier", "released once waves 0-3 have queued their partials")
    if db:
        a("buffer_load_dwordx4 v[64:67], v11, s[28:31], s72 offen sc1")
        a("buffer_load_dwordx4 v[68:71], v11, s[28:31], s72 offen offset:512 sc1")
        a(f"s_nop {db-1}")
        a("s_mov_b32 s52, 12")
        L("L_y2")
        for (cur, nxt) in ((64, 72), (72, 64)):
            a(f"buffer_load_dwordx4 v[{nxt}:{nxt+3}], v11, s[28:31], s72 offen sc1")
            a(f"buffer_load_dwordx4 v[{nxt+4}:{nxt+7}], v11, s[28:31], s72 offen offset:512 sc1")
            a("s_waitcnt vmcnt(2)")
            for j in range(8): a(f"v_xor_b32 v{44+j}, s{8+(j&3) if (j&3) < 3 else 94}, v{cur+j}")
            or8("L_y_ok")
        a("s_sub_u32 s52, s52, 1")
        a("s_cbranch_scc0 L_y2")
    L("L_y_poll")
    a("buffer_load_dwordx4 v[44:47], v11, s[28:31], s72 offen sc1")
    a("buffer_load_dwordx4 v[48:51], v11, s[28:31], s72 offen offset:512 sc1")
    check8("L_y_ok", 94, 8)
    a("s_add_u32 s75, s75, 1")
    a(f"s_cmp_lt_u32 s75, {wb+1}")
    a("s_cbranch_scc1 L_y_poll")
    C("long wait: accept sources on other XCDs too, and remember to write back before ending")
    a("s_mov_b32 s95, 1")
    a("v_and_b32 v47, -8, v47")
    a("v_and_b32 v51, -8, v51")
    or8("L_y_ok")
    fallback("L_y_poll", count=False)
    L("L_y_ok")
    stamp(5)
    for j in range(4): a(f"v_add_f32 v{44+j}, v{44+j}, v{48+j}")
    a("s_nop 1")
    a("v_permlane32_swap_b32 v44, v46"); a("v_permlane32_swap_b32 v45, v47")
    a("v_add_f32 v44, v44, v46"); a("v_add_f32 v45, v45, v47")
    a("s_nop 1")
    a("v_permlane16_swap_b32 v44, v45")
    a("v_add_f32 v44, v44, v45")
    a("s_nop 1")
    a("v_add_f32_dpp v44, v44, v44 row_ror:8 row_mask:0xf bank_mask:0xf")
    a("v_cvt_pk_bf16_f32 v44, v44, v44")
    a("v_and_b32 v44, 0xffff0000, v44", "y")
    a("v_mul_f32 v44, v44, v24")
    a("v_cvt_pk_bf16_f32 v44, v44, v44")
    a("v_and_b32 v44, 0xffff0000, v44", "y * r_sel")
    a("v_fma_f32 v44, v23, 0, v44")
    a("v_add_f32 v44, v23, v44")
    a("v_cvt_pk_bf16_f32 v44, v44, v44")
    a("s_mov_b32 exec_lo, 0x00ff00ff")
    a("s_mov_b32 exec_hi, 0x00ff00ff")
    a("buffer_store_short v44, v22, s[36:39], s97 offen")
    stamp(6)
    a("s_cmp_lg_u32 s2, 0")
    a("s_cbranch_scc1 L_fin")
    C("advance the epoch record: every workgroup has read it by now")
    for j in range(4): a(f"v_mov_b32 v{28+j}, s{4+j}")
    a("v_mov_b32 v32, 0")
    a("s_mov_b64 exec, 1")
    a("buffer_store_dwordx4 v[28:31], v32, s[28:31], 0 offen")
    L("L_fin")
    a("s_cmp_eq_u32 s95, 0")
    a(f"s_cbranch_scc1 {END}")
    if not stamps: a("s_barrier", "waves 0-3 have ended: their partials are in L2")
    a("buffer_wbl2 sc1")
    a("s_waitcnt vmcnt(0)")
    a(f"s_branch {END}" if stamps else "s_endpgm")

    L("L_o2")
    C("long wait: look at the written-through h block of the line instead")
    a("s_lshl_b32 s98, s98, 4")
    a(f"s_sub_u32 s98, s98, {0x80000 - WS_H}")
    L("L_o2_poll")
    a("buffer_load_dwordx4 v[44:47], v12, s[28:31], s98 offen sc1")
    a("buffer_load_dwordx4 v[48:51], v12, s[28:31], s98 offen offset:1024 sc1")
    a("s_waitcnt vmcnt(0)")
    for j in range(8): a(f"v_xor_b32 v{44+j}, s{44+(j&3)}, v{44+j}")
    a("v_or3_b32 v52, v44, v45, v46"); a("v_or3_b32 v53, v47, v48, v49"); a("v_or3_b32 v52, v52, v50, v51")
    a("v_or_b32 v52, v52, v53"); a("v_and_b32 v52, 0xffff, v52")
    a("v_cmp_ne_u32 vcc, 0, v52"); a("s_cbranch_vccz L_o_ok")
    fallback("L_o2_poll")
    L("L_router")
    a("s_waitcnt vmcnt(11)")
    if xb: a("s_barrier")
    a("s_barrier")
    a("s_waitcnt vmcnt(3)")
    a("v_mov_b32 v36, 0")
    for j in range(8):
        a(f"v_dot2_f32_bf16 v36, v{64+j}, v{72+j}, v36")
    for ctl in ["quad_perm:[1,0,3,2]", "quad_perm:[2,3,0,1]", "row_half_mirror", "row_mirror"]:
        a("s_nop 2")
        a(f"v_add_f32_dpp v36, v36, v36 {ctl} row_mask:0xf bank_mask:0xf")
    a("v_mov_b32 v37, v36")
    a("s_nop 1")
    a("v_permlane16_swap_b32 v36, v37")
    a("v_add_f32 v36, v36, v37")
    a("v_mov_b32 v37, v36")
    a("s_nop 1")
    a("v_permlane32_swap_b32 v36, v37")
    a("v_add_f32 v36, v36, v37")
    a("v_cvt_pk_bf16_f32 v36, v36, v36")
    a("v_and_b32 v36, 0xffff0000, v36", "r")
    a("v_mul_f32 v36, 0xbfb8aa3b, v36")
    a("v_exp_f32 v36, v36")
    a("s_nop 0")
    a("v_add_f32 v36, 1.0, v36")
    a("v_rcp_f32 v36, v36")
    a("s_and_b32 s64, s44, 0xffff")
    a("v_cvt_pk_bf16_f32 v36, v36, v36")
    a("v_lshl_or_b32 v36, v36, 16, s64")
    for j in range(1, 4): a(f"v_mov_b32 v{36+j}, s{44+j}")
    for n in (1, 0):
        a("s_barrier")
        a(f"s_waitcnt vmcnt({n})")
    a("s_barrier")
    stamp(2)
    a("s_mov_b64 exec, 0xff")
    if not noplain: a("buffer_store_dwordx4 v[36:39], v12, s[28:31], s62 offen")
    a("s_xor_b32 s62, s62, 0x4000")
    a("s_barrier")
    a("buffer_store_dwordx4 v[36:39], v12, s[28:31], s62 offen sc1", "written-through copy for readers on other XCDs")
    a("s_mov_b64 exec, -1")
    a("s_branch L_defer")

    if probe >= 0:
        L("L_stamp")
        a("s_waitcnt lgkmcnt(0)")
        a(f"s_sub_u32 s90, s{76+2*probe}, s76")
        a("s_lshl_b32 s90, s90, 2")
        a("s_sub_u32 s90, 6000, s90" if neg else "s_add_u32 s90, s90, 1500")
        a(f"s_cmp_eq_u32 s{76+2*probe}, 0")
        a("s_cselect_b32 s90, 1500, s90")
        if probe in (5, 6):
            a("s_cmp_lg_u32 s3, 7")
            a("s_cselect_b32 s90, 1500, s90")
        a("s_min_u32 s90, s90, 100000")
        L("L_spin")
        a("s_sleep 2")
        a("s_memrealtime s[92:93]")
        a("s_waitcnt lgkmcnt(0)")
        a("s_sub_u32 s92, s92, s76")
        a("s_cmp_lt_u32 s92, s90")
        a("s_cbranch_scc1 L_spin")
    elif stamps:
        L("L_stamp")
        a("s_mov_b64 exec, -1")
        a("s_waitcnt lgkmcnt(0)")
        L("L_spin")
        a("s_sleep 8")
        a("s_memrealtime s[92:93]")
        a("s_waitcnt lgkmcnt(0)")
        a("s_sub_u32 s92, s92, s76")
        a("s_cmp_lt_u32 s92, 1200")
        a("s_cbranch_scc1 L_spin")
        a("s_add_u32 s40, s28, 0x8000000"); a("s_addc_u32 s41, s29, 0")
        a("s_mov_b32 s42, 0x100000"); a("s_mov_b32 s43, 0x20000")
        a("s_lshl3_add_u32 s90, s2, s3"); a("s_lshl_b32 s90, s90, 6")
        for j in range(14): a(f"v_mov_b32 v{100+j}, s{76+j}")
        a("v_mov_b32 v114, 0x54414D50"); a("v_mov_b32 v115, 0x53"); a("v_mov_b32 v116, 0")
        a("s_mov_b64 exec, 1")
        for j in range(4): a(f"buffer_store_dwordx4 v[{100+4*j}:{103+4*j}], v116, s[40:43], s90 offen offset:{16*j}")
    L("L_end")
    a("s_endpgm")
    return HEADER.format(kn=KN, lds=LDS) + "\n".join(o) + FOOTER.format(kn=KN)

if __name__ == "__main__":
    out = sys.argv[1]
    kw = {}
    for arg in sys.argv[2:]:
        k, v = arg.split("=")
        kw[k] = int(v)
    open(out, "w").write(gen(**kw))
```

```python
import sys

KN = "standalone__moe_arch_mod__decode_kernel"
HEADER = """; Kernarg layout for this problem (64 bytes, ptrs only, base s[0:1]):
;
;
; @launch grid=(256,1,1) block=(512,1,1) lds={lds}
.amdgcn_target "amdgcn-amd-amdhsa--gfx950"
.text
.globl {kn}
.p2align 8
.type {kn},@function
{kn}:
"""
FOOTER = """
.section .rodata,"a"
.p2align 6
.amdhsa_kernel {kn}
  .amdhsa_next_free_vgpr 160
  .amdhsa_next_free_sgpr 102
  .amdhsa_accum_offset 160
  .amdhsa_group_segment_fixed_size 0
  .amdhsa_kernarg_size 64
  .amdhsa_user_sgpr_count 2
  .amdhsa_user_sgpr_kernarg_segment_ptr 1
  .amdhsa_system_sgpr_workgroup_id_x 1
  .amdhsa_float_denorm_mode_32 3
.end_amdhsa_kernel
"""
WS_RS, WS_H, WS_PART, WS_P, WS_SIZE = 0x1000, 0x10000, 0x40000, 0x200000, 0x400000
L_T, L_X, L_H, LDS = 0x8000, 0x18000, 0x1A000, 0x1B000
CJ = [0x2B5, 0x13F, 0x3D1, 0x088]
XV, WV = 64, 128

def gen(stamps=0, w3=1, wh=1, wr=0, pa=0, sa=0, pt=1, rm=0, db=1, h7=1, rdb=1, hy=1, bb=-1, tl=1, dbg=0, xb=0, tf=0, notouch=0, probe=-1, neg=0, al=1, hs=2, noplain=0, thr=0, thc=2, fs=0, w4=1, ms=0, w0=0, tb=8, limit=22, wb=31, forceremote=0):
    if probe >= 0: stamps = 1
    o = []
    def a(s, c=None): o.append("    " + s + (f"    ; {c}" if c else ""))
    def L(s): o.append(s + ":")
    def C(s): o.append("    ; " + s)
    TM = (1 << tb) - 1
    TF = [' sc1', '', ' nt', ' sc0 sc1'][tf]
    assert not (rm and h7) and pa == 0 and sa == 0 and pt == 1 and tl == 1 and hy == 1 and h7 == 1
    def stamp(k):
        if stamps: a(f"s_memrealtime s[{76+2*k}:{77+2*k}]")
    def fallback(lbl, count=True, extra=None):
        if count: a("s_add_u32 s75, s75, 1")
        a(f"s_and_b32 s74, s75, {wb}")
        a(f"s_cbranch_scc1 {lbl}")
        if extra: a(*extra)
        a("buffer_wbl2 sc1", "long wait: make this XCD's hand-offs visible to every other XCD")
        a(f"s_cmp_lt_u32 s75, {1 << limit}")
        a(f"s_cbranch_scc1 {lbl}")
        a("s_endpgm")
    def tr(n, addr, off):
        a(f"ds_read_b64_tr_b16 v[{WV+4*n}:{WV+1+4*n}], v{addr} offset:{off}")
        a(f"ds_read_b64_tr_b16 v[{WV+2+4*n}:{WV+3+4*n}], v{addr} offset:{off + 2048}")
    def p1(slots):
        for n, sl in enumerate(slots): tr(n, 6, sl*4096)
        nk = len(slots)
        for n, sl in enumerate(slots):
            a(f"s_waitcnt lgkmcnt({2*(nk-1-n)})")
            a(f"v_mfma_f32_16x16x32_bf16 v[40:43], v[{XV+4*sl}:{XV+3+4*sl}], v[{WV+4*n}:{WV+3+4*n}], v[40:43]")
    def publish(voff, sbase, t3, t0=44):
        a("s_mov_b32 exec_hi, 0")
        a("s_nop 6")
        for j in range(4): a(f"v_add_u32 v{40+j}, {1 << (tb-1)}, v{40+j}")
        for j in range(4): a(f"v_bfi_b32 v{40+j}, v15, s{t0+j if j < 3 else t3}, v{40+j}")
        a(f"buffer_store_dwordx4 v[40:43], v{voff}, s[28:31], s{sbase} offen")
        a("s_mov_b32 exec_hi, -1")
    def wd_loads():
        a("s_lshl_b32 m0, s3, 12")
        for i, rows in enumerate([0, 16, 4, 20]):
            a(f"s_add_u32 s68, s70, {rows*2048 - i*1024}")
            a(f"buffer_load_dwordx4 v8, s[24:27], s68 offen offset:{i*1024} nt lds")
    def or8(ok):
        a("v_or3_b32 v52, v44, v45, v46"); a("v_or3_b32 v53, v47, v48, v49"); a("v_or3_b32 v52, v52, v50, v51")
        a("v_or_b32 v52, v52, v53"); a("v_and_b32 v52, v52, v15")
        a("v_cmp_ne_u32 vcc, 0, v52"); a(f"s_cbranch_vccz {ok}")
    def check8(ok, x3, t0=48):
        a("s_waitcnt vmcnt(0)")
        for j in range(8): a(f"v_xor_b32 v{44+j}, s{t0+(j&3) if (j&3) < 3 else x3}, v{44+j}")
        or8(ok)

    END = "L_stamp" if stamps else "L_end"
    if stamps:
        for j in range(76, 90): a(f"s_mov_b32 s{j}, 0")
    stamp(0)
    a("s_load_dwordx16 s[4:19], s[0:1], 0")
    a("s_cmp_ge_u32 s2, 256")
    a("s_cbranch_scc1 L_end")
    a("v_lshrrev_b32 v2, 6, v0")
    a("v_and_b32 v1, 63, v0", "lane")
    a("v_readfirstlane_b32 s3, v2", "wave")
    a("s_getpc_b64 s[66:67]")
    L("L_pc")
    a("v_lshlrev_b32 v54, 7, v1")
    a("s_cmp_lg_u32 s3, 7")
    a("s_cbranch_scc1 L_nopf")
    a("v_min_u32 v54, L_end-L_pc, v54")
    a("global_load_dword v60, v54, s[66:67]", "pull the code into L2 while the kernel arguments arrive")
    L("L_nopf")
    a("s_and_b32 s56, s2, 7", "m")
    if fs:
        a(f"s_lshl_b32 s57, s56, 2")
        a(f"s_lshr_b32 s56, {fs}, s57")
        a("s_and_b32 s56, s56, 7", "FFN column group of this XCD")
    a("s_bfe_u32 s57, s2, 0x20003", "kq")
    a("s_bfe_u32 s58, s2, 0x20005", "cbx")
    a("s_lshr_b32 s59, s2, 7", "mat")
    a("s_add_u32 s63, s56, 3")
    a("s_and_b32 s63, s63, 7")
    a("s_cmp_eq_u32 s63, 7")
    a("s_cselect_b32 s63, 3, s63", "js: the line of the group that is split four ways")
    a("s_mul_i32 s61, s56, 7")
    a("s_bfe_u32 s62, s2, 0x30004")
    a("s_cmp_ge_u32 s62, s63")
    a("s_addc_u32 s62, s62, 0")
    a("s_and_b32 s65, s57, 1")
    a("s_lshl_b32 s65, s65, 1")
    a("s_cmp_eq_u32 s58, 3")
    a("s_cselect_b32 s62, s63, s62")
    a("s_cselect_b32 s65, s57, s65", "first k-block / 8")
    a("s_cselect_b32 s64, 4, 8", "k-blocks per half")
    a("s_cselect_b32 s74, 16, 0", "LDS KBs skipped at the head of each half")
    a("s_add_u32 s62, s62, s61", "128-byte line within a weight row")
    a("v_lshrrev_b32 v17, 3, v1")
    a("v_and_b32 v17, 6, v17")
    a("v_xor_b32 v17, v17, v1")
    a("v_and_b32 v17, 7, v17")
    a("v_lshlrev_b32 v17, 4, v17", "swizzled 16-byte piece within a line")
    a("v_bfe_u32 v16, v1, 3, 2")
    a("v_lshrrev_b32 v9, 5, v1")
    a("v_lshl_add_u32 v16, v9, 3, v16", "row within the 8-row piece")
    a("v_mul_u32_u24 v4, 7168, v16")
    a("v_add_u32 v4, v4, v17", "gate/up voffset")
    a("s_lshr_b32 s66, s3, 2")
    if ms:
        if ms == 1: a("s_mov_b32 s17, s59" if False else "s_mov_b32 s97, s59")
        else:
            a("s_bfe_u32 s97, s2, 0x10004")
            if ms == 3: a("s_xor_b32 s97, s97, s59")
        a("s_xor_b32 s67, s66, s97", "some workgroups walk their two K halves in the other order")
        a("s_mul_i32 s67, s67, s64")
    else:
        a("s_mul_i32 s67, s66, s64")
    a("s_lshl3_add_u32 s67, s65, s67")
    a("s_lshl_b32 s67, s67, 3")
    a("s_and_b32 s68, s3, 1")
    a("s_lshl2_add_u32 s67, s68, s67")
    a("s_bfe_u32 s68, s3, 0x10001")
    a("s_add_u32 s67, s67, s68")
    a(f"s_mul_i32 s67, s67, {4*7168}")
    a("s_lshl_b32 s68, s62, 7")
    a("s_add_u32 s92, s67, s68", "first piece of this wave")
    a("s_and_b32 s68, s3, 3")
    a("s_lshl_b32 s66, s66, 5")
    a("s_add_u32 s66, s66, s68")
    a("s_add_u32 s66, s66, s74")
    a("s_lshl_b32 s66, s66, 10")
    a(f"s_add_u32 s90, s66, {L_T}")
    a(f"s_mov_b32 s93, {32*7168}")
    a("s_mov_b32 s22, 7340032"); a("s_mov_b32 s23, 0x20000")
    a("s_cmp_ge_u32 s3, 4")
    a("s_cbranch_scc1 L_addr")
    a("s_cmp_eq_u32 s59, 0")
    a("s_mov_b32 m0, s90")
    a("s_waitcnt lgkmcnt(0)")
    L("L_issue")
    a("s_cselect_b64 s[20:21], s[8:9], s[10:11]")
    a("s_cmp_eq_u32 s58, 3")
    a("s_cbranch_scc1 L_short")
    for kb in range(8):
        if kb == 4: L("L_short")
        if thr >> kb & 1:
            a(f"s_cmp_lt_u32 s58, {thc}")
            a(f"s_cbranch_scc1 L_thr{kb}")
            a("s_waitcnt vmcnt(0)")
            L(f"L_thr{kb}")
        if kb == bb:
            a("s_cmp_lt_u32 s3, 4")
            a("s_cbranch_scc1 L_bb")
            a(f"s_waitcnt vmcnt({bb})")
            L("L_bb")
        a("buffer_load_dwordx4 v4, s[20:23], s92 offen nt lds")
        if kb < 7:
            a("s_addk_i32 m0, 0x1000")
            a("s_add_u32 s92, s92, s93")
    a("s_cmp_ge_u32 s3, 4")
    a("s_cbranch_scc1 L_tags")
    L("L_addr")
    a("v_lshl_add_u32 v8, v16, 11, v17", "w_down voffset")
    a("v_and_b32 v18, 7, v1")
    a("v_lshlrev_b32 v18, 4, v18")
    a("v_bfe_u32 v10, v1, 3, 1")
    a("v_lshl_add_u32 v10, v10, 11, v18")
    a("v_bfe_u32 v11, v1, 4, 1")
    a("v_lshl_add_u32 v10, v11, 7, v10", "phase-1 partial store offset")
    a("v_lshlrev_b32 v12, 4, v1")
    a("s_mov_b64 s[26:27], s[22:23]")
    a(f"s_mov_b32 s30, {WS_SIZE}"); a("s_mov_b32 s31, s23")
    a("s_movk_i32 s34, 16384"); a("s_mov_b32 s35, s23")
    a("s_mov_b64 s[38:39], s[34:35]")
    a("s_movk_i32 s42, 2048"); a("s_mov_b32 s43, s23")
    C("partial slot: (line*4 + t)*4096 + [cbx = 3: (kq>>1)*1024] + mat*512 + (kq&1)*256")
    a("s_lshl2_add_u32 s60, s59, s57", "q = 4*mat + kq")
    a("s_lshl2_add_u32 s69, s62, s68")
    a("s_lshr_b32 s52, s57, 1")
    a("s_cmp_eq_u32 s58, 3")
    a("s_cselect_b32 s52, s52, 0")
    a("s_lshl2_add_u32 s69, s69, s52")
    a("s_lshl1_add_u32 s69, s69, s59")
    a("s_and_b32 s52, s57, 1")
    a("s_lshl1_add_u32 s69, s69, s52")
    a("s_lshl_b32 s69, s69, 8")
    a(f"s_add_u32 s69, s69, {WS_PART}")
    a("s_lshl_b32 s96, s56, 10")
    a(f"s_add_u32 s96, s96, {WS_RS}")
    C("phase-2 tile: row block u = 8*mat + 4*(cbx&1) + kq, column line cb16 = 2*blk + (cbx < 2)")
    a("s_bfe_u32 s53, s2, 0x30003")
    a("s_lshl3_add_u32 s53, s59, s53")
    a("s_mul_i32 s55, s53, 7")
    a("s_add_u32 s55, s55, s3")
    a("s_lshl_b32 s70, s55, 16")
    a("s_and_b32 s52, s2, 7")
    a("s_cmp_eq_u32 s52, 0")
    a("s_cselect_b32 s101, 5, s52")
    a("s_cmp_eq_u32 s52, 5")
    a("s_cselect_b32 s101, 0, s101")
    a("s_cmp_lt_u32 s58, 2")
    a("s_addc_u32 s54, s101, s101")
    a("s_lshl_b32 s72, s62, 7")
    a(f"s_add_u32 s98, s72, {0x8000}", "'partials consumed' record of this workgroup's own line")
    a("s_cmp_ge_u32 s3, 4")
    a("s_cbranch_scc0 L_rest")
    C("waves 4-7: stage x (batches 2t, 2t+1), first touch of the lines this workgroup publishes into")
    a("s_lshl_b32 s74, s74, 4")
    a("s_lshl_b32 s64, s74, 15")
    a("s_lshl_b32 s65, s65, 9")
    a("s_lshl_b32 s72, s68, 12")
    a("s_add_u32 s65, s65, s72")
    a("s_lshr_b32 s72, s72, 1")
    a(f"s_add_u32 m0, s72, {L_X}")
    a("s_lshl_b32 s72, s68, 3")
    if ms:
        a("s_lshl_b32 s52, s97, 5")
        a("s_add_u32 s72, s72, s52")
        a("v_xor_b32 v9, s97, v9")
    a("v_xor_b32 v6, s72, v1")
    a("v_add_u32 v2, 1, v9")
    a("v_mul_u32_u24 v2, s74, v2")
    a("v_bfe_u32 v7, v6, 4, 1")
    a("v_xor_b32 v7, 1, v7")
    a("v_mul_u32_u24 v7, s64, v7")
    a("v_sub_u32 v2, v7, v2")
    a("v_lshl_add_u32 v13, v6, 4, v2")
    a("v_xor_b32 v6, 4, v6")
    a("v_lshl_add_u32 v14, v6, 4, v2")
    a("s_add_u32 s74, s65, 1024")
    a("s_waitcnt lgkmcnt(0)")
    a("s_mov_b64 s[32:33], s[4:5]"); a("s_mov_b64 s[28:29], s[18:19]"); a("s_mov_b64 s[40:41], s[6:7]")
    a("buffer_load_dwordx4 v13, s[32:35], s65 offen lds")
    a("buffer_load_dwordx4 v14, s[32:35], s74 offen offset:1024 lds")
    a("buffer_load_dword v61, v10, " + ("s[32:35], 0" if notouch & 1 else "s[28:31], s69") + " offen" + TF)
    a("s_lshl2_add_u32 s52, s3, s58")
    a("s_cmp_lg_u32 s52, 31")
    a("s_cbranch_scc1 L_rest")
    C("router operands: wave 7 of a cbx = 3 workgroup scores batch q")
    a("s_lshl_b32 s72, s60, 11")
    a("s_lshl_b32 s62, s60, 7")
    a("s_add_u32 s62, s62, s96")
    a("buffer_load_dwordx4 v[64:67], v12, s[32:35], s72 offen")
    a("buffer_load_dwordx4 v[68:71], v12, s[32:35], s72 offen offset:1024")
    a("buffer_load_dwordx4 v[72:75], v12, s[40:43], 0 offen")
    a("buffer_load_dwordx4 v[76:79], v12, s[40:43], 0 offen offset:1024")
    a("buffer_load_dword v62, v18, s[28:31], s62 offen" + TF)
    a("s_add_u32 s72, s61, s60")
    a("s_lshl_b32 s72, s72, 7")
    a(f"s_add_u32 s72, s72, {0x8000}")
    a("buffer_load_dword v63, v18, s[28:31], s72 offen" + TF)
    L("L_rest")
    a("s_load_dwordx4 s[44:47], s[18:19], 0", "epoch record")
    a("s_mov_b64 s[24:25], s[12:13]"); a("s_mov_b64 s[32:33], s[4:5]"); a("s_mov_b64 s[28:29], s[18:19]"); a("s_mov_b64 s[36:37], s[14:15]")
    a("s_lshl_b32 s52, s54, 7")
    a("s_add_u32 s70, s70, s52", "w_down k-block of this wave")
    a("s_and_b32 s100, s54, 7")
    a("s_cmp_eq_u32 s100, 3")
    a(f"s_cselect_b32 s100, {7-w3}, {7-w0}")
    if w0:
        a("s_cmp_eq_u32 s58, 2")
        a("s_cselect_b32 s100, 7, s100")
    a("s_cmp_eq_u32 s58, 3")
    a(f"s_cselect_b32 s100, {7-wh}, s100", "k-blocks from s100 on are queued before the publish")
    if w4:
        a("s_cmp_eq_u32 s56, 4")
        a("s_cselect_b32 s100, 7, s100")
    if wr:
        a("s_cmp_eq_u32 s58, 2")
        a(f"s_cselect_b32 s100, {7-wr}, s100")
    a("s_mov_b32 s75, 0")
    a("s_mov_b32 s73, 0x07060302")
    a(f"v_mov_b32 v15, {TM}")
    a("v_lshrrev_b32 v19, 4, v1")
    a("v_bfe_u32 v9, v1, 3, 2")
    a("v_xor_b32 v9, s3, v9")
    a("v_and_b32 v9, 3, v9")
    a("v_lshlrev_b32 v9, 5, v9")
    a("v_lshrrev_b32 v6, 2, v1")
    a("v_lshl_add_u32 v9, v6, 7, v9")
    a("v_and_b32 v7, 3, v1")
    a("v_lshl_add_u32 v9, v7, 3, v9", "transposing-read address (w_down image)")
    a(f"v_add_u32 v6, {L_T}, v9", "same for the gate/up image")
    a("v_bfe_u32 v54, v1, 2, 1")
    a("v_lshl_add_u32 v14, v7, 1, v54")
    a("v_lshlrev_b32 v14, 4, v14")
    a("v_lshl_add_u32 v14, v19, 7, v14")
    a(f"v_add_u32 v14, {L_H}, v14", "h operand address (rows kept in the order 2*(b&3) + (b>>2))")
    a("v_and_b32 v7, 7, v1")
    a("v_mul_u32_u24 v7, 1088, v7")
    a("v_lshl_add_u32 v7, v19, 4, v7")
    a(f"v_add_u32 v7, {L_X}, v7", "x operand address")
    a("v_lshlrev_b32 v13, 3, v0")
    a(f"v_add_u32 v13, {L_H}, v13")
    a("s_lshl_b32 s71, s55, 10")
    a(f"s_add_u32 s71, s71, {WS_H}")
    C("phase-2 partials reuse the producer's phase-1 lines: gather address of source r = (cbx&2)*4 + lane/8")
    a("s_and_b32 s64, s58, 2")
    a("s_lshl_b32 s64, s64, 2")
    a("v_lshrrev_b32 v11, 3, v1")
    a("v_add_u32 v11, s64, v11")
    a("v_lshrrev_b32 v26, 1, v11")
    a("v_cmp_le_u32 vcc, s63, v26")
    a("v_and_b32 v27, 1, v26")
    a("v_lshlrev_b32 v27, 10, v27")
    a("v_addc_co_u32 v26, vcc, 0, v26, vcc")
    a("v_lshlrev_b32 v26, 14, v26")
    a("s_lshl_b32 s64, s63, 14")
    a("v_add_u32 v27, s64, v27")
    a("v_cmp_lt_u32 vcc, 11, v11")
    a("v_and_b32 v11, 1, v11")
    a("v_lshl_add_u32 v11, v11, 8, v18")
    a("v_cndmask_b32 v26, v26, v27, vcc")
    a("v_add_u32 v11, v11, v26")
    a("s_lshr_b32 s72, s53, 2")
    a("s_lshl2_add_u32 s72, s61, s72")
    a("s_and_b32 s64, s53, 1")
    a("s_lshl1_add_u32 s72, s72, s64")
    a("s_lshl_b32 s72, s72, 4")
    a("s_bfe_u32 s64, s53, 0x10001")
    a("s_add_u32 s72, s72, s64")
    a("s_lshl_b32 s72, s72, 7")
    a(f"s_add_u32 s72, s72, {WS_PART}", "7m*16384 + nb*4096 + c*2048 + q*128")
    a("s_bfe_u32 s99, s53, 0x10001")
    a("s_lshl_b32 s99, s99, 2")
    a("v_add_u32 v20, s99, v19", "batch of this lane's output")
    a("v_lshlrev_b32 v21, 7, v20")
    a("s_lshr_b32 s97, s53, 2")
    a("s_lshl2_add_u32 s97, s54, s97")
    a("s_and_b32 s99, s53, 1")
    a("s_lshl1_add_u32 s97, s97, s99")
    a("s_lshl_b32 s97, s97, 4")
    a("v_lshrrev_b32 v22, 3, v18")
    a("v_lshl_add_u32 v22, v20, 11, v22", "x / out voffset")
    C("L2 prefetch target: rows 56*w + lane of the w_down tile of workgroup (mat, 2, kq)")
    a("s_mul_i32 s99, s3, 24*2048")
    a("s_add_u32 s99, s99, s70")
    a(f"s_sub_u32 s99, s99, {4*224*2048}")
    if tl:
        a("s_andn2_b32 s64, s53, 4")
        a("s_lshl2_add_u32 s64, s64, s58")
        a("s_add_u32 s64, s64, 2")
        a("s_mul_i32 s64, s64, 56*2048")
        a("s_lshl_b32 s68, s101, 8")
        a("s_add_u32 s64, s64, s68")
        a("s_cmp_lt_u32 s58, 2")
        a("s_cselect_b32 s99, s64, s99")
        a("s_cselect_b32 s91, s3, 0")
        if hs == 3:
            a("s_cmp_eq_u32 s58, 0")
            a("s_cselect_b32 s91, 0, s91")
        if hs == 4: a("s_mov_b32 s91, 0")
    a("v_lshlrev_b32 v25, 11, v1")
    C("reducer: column group 8*(7m + q) + w")
    a("s_add_u32 s67, s61, s60")
    a("s_lshl3_add_u32 s67, s67, s3")
    a("s_lshl_b32 s65, s67, 4")
    a(f"s_add_u32 s65, s65, {0x8000}")
    a("s_lshl_b32 s66, s67, 11")
    a(f"s_add_u32 s66, s66, {WS_PART}")
    a("s_lshl_b32 s67, s67, 8")
    a(f"s_add_u32 s67, s67, {WS_H}")
    a("v_lshlrev_b32 v56, 2, v1")
    a("s_getreg_b32 s94, hwreg(HW_REG_XCC_ID, 0, 3)")
    if forceremote: a("s_bfe_u32 s94, s2, 0x30003")
    a("s_mov_b32 s95, 0")
    a("s_cmp_ge_u32 s3, 4")
    a("s_cbranch_scc0 L_tags")
    a("s_cmp_eq_u32 s59, 0")
    a("s_mov_b32 m0, s90")
    a("s_branch L_issue")
    L("L_tags")
    a("s_waitcnt lgkmcnt(0)")
    for j in range(4): a(f"s_add_u32 s{44+j}, s{44+j}, {CJ[j]}", "tags of this launch" if j == 0 else None)
    for j in range(4): a(f"s_and_b32 s{48+j}, s{44+j}, {TM}")
    for j in range(4): a(f"s_add_u32 s{4+j}, s{44+j}, {CJ[j]}", "tags of the phase-2 partials = next epoch record" if j == 0 else None)
    for j in range(4): a(f"s_and_b32 s{8+j}, s{4+j}, {TM}")
    a("s_xor_b32 s94, s94, s11", "word 3 of a phase-2 partial also names the producer's XCD")
    a("v_and_b32 v54, 3, v1")
    a("v_mov_b32 v55, s44")
    for j in range(1, 4):
        a(f"v_mov_b32 v57, s{44+j}")
        a(f"v_cmp_eq_u32 vcc, {j}, v54")
        a("s_nop 1")
        a("v_cndmask_b32 v55, v55, v57, vcc")
    a("v_mov_b32 v58, v55")
    a("v_and_b32 v55, 0xffff, v55", "per-lane h tag")
    for j in range(4): a(f"v_mov_b32 v{40+j}, 0")

    C("---------------- phase 1: waves 4-7 pace the stages, waves 0-3 multiply")
    a("s_cmp_ge_u32 s3, 4")
    a("s_cbranch_scc0 L_comp")
    a("s_lshl2_add_u32 s52, s3, s58")
    a("s_cmp_eq_u32 s52, 31")
    a("s_cbranch_scc1 L_router")
    a("s_waitcnt vmcnt(8)")
    a("s_cmp_lg_u32 s58, 3")
    a("s_cbranch_scc1 L_s0")
    if sa:
        a("s_cmp_eq_u32 s3, 7")
        a("s_cbranch_scc1 L_r7")
        a("s_cmp_lt_u32 s3, s100")
        a("s_cbranch_scc1 L_r7")
        wd_loads()
        a("s_waitcnt vmcnt(8)")
        a("s_barrier")
        a("s_waitcnt vmcnt(7)")
        a("s_branch L_s0x")
        L("L_r7")
    a("s_waitcnt vmcnt(4)")
    L("L_s0")
    if xb: a("s_barrier")
    a("s_barrier")
    a("s_waitcnt vmcnt(3)")
    a("s_cmp_lt_u32 s3, s100")
    a("s_cbranch_scc1 L_s1")
    a("s_cmp_eq_u32 s3, 7")
    a("s_cbranch_scc1 L_s1")
    wd_loads()
    L("L_s0x")
    a("s_barrier")
    a("s_waitcnt vmcnt(5)")
    a("s_barrier")
    a("s_waitcnt vmcnt(4)")
    a("s_barrier")
    stamp(2)
    a("s_branch L_pub")
    L("L_s1")
    if dbg == 1: stamp(4)
    a("s_barrier")
    a("s_waitcnt vmcnt(1)")
    if dbg == 1: stamp(5)
    a("s_barrier")
    a("s_waitcnt vmcnt(0)")
    if dbg == 1: stamp(6)
    a("s_barrier")
    stamp(2)
    a("s_branch L_pub")
    L("L_comp")
    def xr(slots):
        for sl in slots:
            if sl == 0: a(f"ds_read_b128 v[{XV}:{XV+3}], v7")
            else:
                a(f"v_xor_b32 v18, {sl << 6}, v7")
                a(f"ds_read_b128 v[{XV+4*sl}:{XV+3+4*sl}], v18")
    if not xb: a("s_waitcnt vmcnt(0)")
    a("s_cmp_eq_u32 s58, 3")
    a("s_barrier")
    if dbg == 1: stamp(6)
    xr([4, 5, 6, 7, 12, 13, 14, 15])
    if xb:
        a("s_cbranch_scc1 L_shortx")
        a("s_waitcnt lgkmcnt(4)")
        xr([0, 1, 2, 3, 8, 9, 10, 11])
        L("L_shortx")
        a("s_waitcnt vmcnt(0)")
        a("s_barrier")
        a("s_cbranch_scc1 L_short0")
    else:
        a("s_cbranch_scc1 L_short0")
        a("s_waitcnt lgkmcnt(4)")
        xr([0, 1, 2, 3, 8, 9, 10, 11])
        a("s_waitcnt lgkmcnt(4)")
    p1([0, 1, 2, 3])
    L("L_short0")
    a("s_waitcnt lgkmcnt(4)")
    p1([4, 5, 6, 7])
    a("s_barrier")
    a("s_cbranch_scc1 L_short1")
    p1([8, 9, 10, 11])
    L("L_short1")
    p1([12])
    a("s_barrier")
    p1([13, 14])
    a("s_barrier")
    stamp(2)
    p1([15])
    publish(10, 69, 47)
    L("L_pub")
    a("s_barrier", "the partials are queued ahead of the w_down loads")
    a("s_cmp_lt_u32 s58, 2")
    a("s_cbranch_scc1 L_defer")
    a("s_cmp_eq_u32 s60, 7")
    a("s_cbranch_scc1 L_defer")
    a("s_cmp_eq_u32 s58, 2")
    a("s_cbranch_scc1 L_red")
    a(f"s_cmp_ge_u32 s3, {hs}")
    a("s_cbranch_scc1 L_defer")
    a("buffer_load_dword v61, v25, s[24:27], s99 offen", "L2 prefetch for the paired reducer")
    a("s_branch L_defer")
    L("L_red")
    C("---------------- reducer: partials -> h")
    a("s_cmp_eq_u32 s60, s63")
    a("s_cbranch_scc1 L_r4_poll")
    if rdb:
        a("buffer_load_dwordx4 v[64:67], v12, s[28:31], s66 offen sc1")
        a("s_mov_b32 s52, 12")
        L("L_r2")
        for (cur, nxt) in ((64, 68), (68, 64)):
            a(f"buffer_load_dwordx4 v[{nxt}:{nxt+3}], v12, s[28:31], s66 offen sc1")
            a("s_waitcnt vmcnt(1)")
            for j in range(4): a(f"v_xor_b32 v{44+j}, s{48+j}, v{cur+j}")
            a("v_or3_b32 v52, v44, v45, v46")
            a("v_or_b32 v52, v52, v47")
            a("v_and_b32 v52, v52, v15")
            a("v_cmp_ne_u32 vcc, 0, v52")
            a("s_cbranch_vccz L_r_ok")
        a("s_sub_u32 s52, s52, 1")
        a("s_cbranch_scc0 L_r2")
    L("L_r_poll")
    a("buffer_load_dwordx4 v[44:47], v12, s[28:31], s66 offen sc1")
    a("s_waitcnt vmcnt(0)")
    for j in range(4): a(f"v_xor_b32 v{44+j}, s{48+j}, v{44+j}")
    a("v_or3_b32 v52, v44, v45, v46")
    a("v_or_b32 v52, v52, v47")
    a("v_and_b32 v52, v52, v15")
    a("v_cmp_ne_u32 vcc, 0, v52")
    a("s_cbranch_vccz L_r_ok")
    fallback("L_r_poll")
    L("L_r4_poll")
    a("buffer_load_dwordx4 v[44:47], v12, s[28:31], s66 offen sc1")
    a("buffer_load_dwordx4 v[48:51], v12, s[28:31], s66 offen offset:1024 sc1")
    check8("L_r4_ok", 51)
    fallback("L_r4_poll")
    L("L_r4_ok")
    for j in range(4): a(f"v_add_f32 v{44+j}, v{44+j}, v{48+j}")
    a("s_nop 0")
    L("L_r_ok")
    if dbg == 0: stamp(6)
    a("v_permlane16_swap_b32 v44, v45")
    a("v_permlane16_swap_b32 v46, v47")
    a("v_add_f32 v44, v44, v45")
    a("v_add_f32 v46, v46, v47")
    a("s_nop 1")
    a("v_permlane32_swap_b32 v44, v46", "v44 = x.Wg, v46 = x.Wu")
    a("v_cvt_pk_bf16_f32 v44, v44, v46")
    a("v_lshlrev_b32 v45, 16, v44")
    a("v_mul_f32 v46, 0xbfb8aa3b, v45")
    a("v_exp_f32 v46, v46")
    a("v_and_b32 v44, 0xffff0000, v44")
    a("v_add_f32 v46, 1.0, v46")
    a("v_rcp_f32 v46, v46")
    a("s_nop 0")
    a("v_mul_f32 v45, v45, v46", "silu")
    a("v_cvt_pk_bf16_f32 v45, v45, v45")
    a("v_and_b32 v45, 0xffff0000, v45")
    a("v_mul_f32 v45, v45, v44")
    a("v_cvt_pk_bf16_f32 v45, v45, v45")
    a("v_lshl_or_b32 v45, v45, 16, v55")
    a("buffer_store_dword v45, v56, s[28:31], s67 offen sc1")
    a("s_mov_b64 exec, 15")
    if not noplain: a("buffer_store_dword v58, v56, s[28:31], s65 offen")
    a("s_mov_b64 exec, -1")
    a("s_barrier")
    if rm:
        a("s_cmp_ge_u32 s3, 4")
        a("s_cbranch_scc1 L_defer")
        stamp(3)
        wd_loads()
        a("buffer_load_dwordx4 v[44:47], v12, s[28:31], s71 offen sc1")
        a("buffer_load_dwordx4 v[48:51], v12, s[28:31], s65 offen sc1")
        a("s_waitcnt vmcnt(2)")
        a("s_barrier")
        stamp(1)
        a("s_branch L_tr")

    C("---------------- phase 2")
    L("L_defer")
    stamp(3)
    a("s_cmp_eq_u32 s3, 7")
    a("s_cbranch_scc1 L_final")
    a("s_cmp_ge_u32 s3, s100")
    a("s_cbranch_scc1 L_p2")
    wd_loads()
    L("L_p2")
    if tl:
        a("s_cmp_lg_u32 s91, 6")
        a("s_cbranch_scc1 L_p2w")
        C("wave 6 of a cbx < 2 workgroup: queued behind the workgroup's own w_down pieces")
        a("buffer_load_dword v61, v25, s[24:27], s99 offen", "L2 prefetch for a reducer")
        a("s_waitcnt vmcnt(1)")
        a("s_branch L_p2b")
        L("L_p2w")
    a("s_waitcnt vmcnt(0)")
    L("L_p2b")
    a("s_barrier")
    stamp(1)
    if h7:
        a("buffer_load_dwordx4 v[44:47], v12, s[28:31], s71 offen sc1")
        a("s_cmp_ge_u32 s3, 4")
        a("s_cbranch_scc1 L_h_chk")
        for kb in range(7): tr(kb, 9, kb*4096)
        a("s_branch L_h_chk")
        L("L_h_poll")
        a("buffer_load_dwordx4 v[44:47], v12, s[28:31], s71 offen sc1")
        L("L_h_chk")
        a("s_waitcnt vmcnt(0)")
        a("v_perm_b32 v48, v45, v44, s73")
        a("v_perm_b32 v49, v47, v46, s73")
        a("ds_write_b64 v13, v[48:49]")
        for j in range(4): a(f"v_xor_b32 v{32+j}, s{44+j}, v{44+j}")
        a("v_or3_b32 v32, v32, v33, v34")
        a("v_or_b32 v32, v32, v35")
        a("v_and_b32 v32, 0xffff, v32")
        a("v_cmp_ne_u32 vcc, 0, v32")
        a("s_cbranch_vccz L_h_ok")
        fallback("L_h_poll")
        L("L_h_ok")
        a("s_cmp_ge_u32 s3, 4")
        a("s_waitcnt lgkmcnt(0)")
        a("s_barrier")
        a("s_cbranch_scc1 L_b")
    else:
        a("s_cmp_ge_u32 s3, 4")
        a("s_cbranch_scc1 L_b")
        a("buffer_load_dwordx4 v[44:47], v12, s[28:31], s71 offen sc1")
        a("buffer_load_dwordx4 v[48:51], v12, s[28:31], s65 offen sc1")
        L("L_tr")
        for kb in range(7): tr(kb, 9, kb*4096)
        a("s_branch L_h_chk")
        L("L_h_poll")
        a("buffer_load_dwordx4 v[44:47], v12, s[28:31], s71 offen sc1")
        a("buffer_load_dwordx4 v[48:51], v12, s[28:31], s65 offen sc1")
        L("L_h_chk")
        a("s_waitcnt vmcnt(0)")
        for j in range(8): a(f"v_xor_b32 v{32+j}, s{44+(j&3)}, v{44+j}")
        a("v_or3_b32 v32, v32, v33, v34"); a("v_or3_b32 v35, v35, v36, v37"); a("v_or3_b32 v32, v32, v38, v39")
        a("v_or_b32 v32, v32, v35")
        a("v_and_b32 v32, 0xffff, v32")
        a("v_cmp_ne_u32 vcc, 0, v32")
        for j in range(4): a(f"v_perm_b32 v{44+j}, v{45+2*j}, v{44+2*j}, s73")
        a("s_cbranch_vccz L_h_ok")
        fallback("L_h_poll")
        L("L_h_ok")
        a("ds_write_b64 v13, v[44:45]")
        a("ds_write_b64 v13, v[46:47] offset:2048")
        a("s_waitcnt lgkmcnt(0)")
        a("s_barrier")
    stamp(4)
    for kb in range(7):
        a(f"ds_read_b128 v[{XV+4*kb}:{XV+3+4*kb}], v14 offset:{kb*512}")
    for kb in range(7):
        a(f"s_waitcnt lgkmcnt({6-kb})")
        c = "0" if kb == 0 else "v[40:43]"
        a(f"v_mfma_f32_16x16x32_bf16 v[40:43], v[{XV+4*kb}:{XV+3+4*kb}], v[{WV+4*kb}:{WV+3+4*kb}], {c}")
    publish(10, 69, 94, 8)
    stamp(5)
    a("s_barrier")
    a("s_waitcnt vmcnt(0)")
    a(f"s_branch {END}" if stamps else "s_endpgm")
    L("L_b")
    if stamps:
        if not h7: a("s_barrier")
        a("s_barrier"); a(f"s_branch {END}")
    else:
        a("s_endpgm")

    C("---------------- final reduction (wave 7)")
    L("L_final")
    if not tl:
        if pt:
            a("s_cmp_ge_u32 s58, 2")
            a("s_cbranch_scc1 L_notouch")
            a("buffer_load_dword v63, v24, s[28:31], s98 offen sc1", "first touch of the inbox")
            if hy:
                a("s_andn2_b32 s64, s53, 4")
                a("s_lshl2_add_u32 s64, s64, s58")
                a("s_add_u32 s64, s64, 2")
                a("s_mul_i32 s64, s64, 56*2048")
                a("s_lshl_b32 s68, s101, 8")
                a("s_add_u32 s64, s64, s68")
                a("buffer_load_dword v61, v25, s[24:27], s64 offen")
            L("L_notouch")
    a("buffer_load_ushort v23, v22, s[32:35], s97 offen")
    L("L_rs_poll")
    a("buffer_load_dwordx4 v[24:27], v21, s[28:31], s96 offen sc1")
    a("s_waitcnt vmcnt(0)")
    for j in range(4): a(f"v_xor_b32 v{28+j}, s{44+j}, v{24+j}")
    a("v_and_b32 v28, 0xffff, v28")
    a("v_or3_b32 v28, v28, v29, v30")
    a("v_or_b32 v28, v28, v31")
    a("v_cmp_ne_u32 vcc, 0, v28")
    a("s_cbranch_vccz L_rs_ok")
    fallback("L_rs_poll", extra=("s_xor_b32 s96, s96, 0x4000", "alternate with the written-through copy"))
    L("L_rs_ok")
    a("v_and_b32 v24, 0xffff0000, v24", "sigmoid(r)")
    a("v_lshlrev_b32 v23, 16, v23", "x")
    a("s_barrier")
    C("the phase-1 lines may be overwritten once the reducer of this workgroup's line has consumed them")
    L("L_o_poll")
    a("buffer_load_dwordx4 v[44:47], v18, s[28:31], s98 offen sc1")
    a("s_waitcnt vmcnt(0)")
    for j in range(4): a(f"v_xor_b32 v{44+j}, s{44+j}, v{44+j}")
    a("v_or3_b32 v52, v44, v45, v46")
    a("v_or_b32 v52, v52, v47")
    a("v_cmp_ne_u32 vcc, 0, v52"); a("s_cbranch_vccz L_o_ok")
    a("s_add_u32 s75, s75, 1")
    a(f"s_cmp_lt_u32 s75, {wb+1}")
    a("s_cbranch_scc1 L_o_poll")
    a("s_branch L_o2")
    L("L_o_ok")
    a("s_barrier")
    a("s_barrier", "released once waves 0-3 have queued their partials")
    if db:
        a("buffer_load_dwordx4 v[64:67], v11, s[28:31], s72 offen sc1")
        a("buffer_load_dwordx4 v[68:71], v11, s[28:31], s72 offen offset:512 sc1")
        a("s_mov_b32 s52, 12")
        L("L_y2")
        for (cur, nxt) in ((64, 72), (72, 64)):
            a(f"buffer_load_dwordx4 v[{nxt}:{nxt+3}], v11, s[28:31], s72 offen sc1")
            a(f"buffer_load_dwordx4 v[{nxt+4}:{nxt+7}], v11, s[28:31], s72 offen offset:512 sc1")
            a("s_waitcnt vmcnt(2)")
            for j in range(8): a(f"v_xor_b32 v{44+j}, s{8+(j&3) if (j&3) < 3 else 94}, v{cur+j}")
            or8("L_y_ok")
        a("s_sub_u32 s52, s52, 1")
        a("s_cbranch_scc0 L_y2")
    L("L_y_poll")
    a("buffer_load_dwordx4 v[44:47], v11, s[28:31], s72 offen sc1")
    a("buffer_load_dwordx4 v[48:51], v11, s[28:31], s72 offen offset:512 sc1")
    check8("L_y_ok", 94, 8)
    a("s_add_u32 s75, s75, 1")
    a(f"s_cmp_lt_u32 s75, {wb+1}")
    a("s_cbranch_scc1 L_y_poll")
    C("long wait: accept sources on other XCDs too, and remember to write back before ending")
    a("s_mov_b32 s95, 1")
    a("v_and_b32 v47, -8, v47")
    a("v_and_b32 v51, -8, v51")
    or8("L_y_ok")
    fallback("L_y_poll", count=False)
    L("L_y_ok")
    stamp(5)
    for j in range(4): a(f"v_add_f32 v{44+j}, v{44+j}, v{48+j}")
    a("s_nop 1")
    a("v_permlane32_swap_b32 v44, v46"); a("v_permlane32_swap_b32 v45, v47")
    a("v_add_f32 v44, v44, v46"); a("v_add_f32 v45, v45, v47")
    a("s_nop 1")
    a("v_permlane16_swap_b32 v44, v45")
    a("v_add_f32 v44, v44, v45")
    a("s_nop 1")
    a("v_add_f32_dpp v44, v44, v44 row_ror:8 row_mask:0xf bank_mask:0xf")
    a("v_cvt_pk_bf16_f32 v44, v44, v44")
    a("v_and_b32 v44, 0xffff0000, v44", "y")
    a("v_mul_f32 v44, v44, v24")
    a("v_cvt_pk_bf16_f32 v44, v44, v44")
    a("v_and_b32 v44, 0xffff0000, v44", "y * r_sel")
    a("v_fma_f32 v44, v23, 0, v44")
    a("v_add_f32 v44, v23, v44")
    a("v_cvt_pk_bf16_f32 v44, v44, v44")
    a("s_mov_b32 exec_lo, 0x00ff00ff")
    a("s_mov_b32 exec_hi, 0x00ff00ff")
    a("buffer_store_short v44, v22, s[36:39], s97 offen")
    stamp(6)
    a("s_cmp_lg_u32 s2, 0")
    a("s_cbranch_scc1 L_fin")
    C("advance the epoch record: every workgroup has read it by now")
    for j in range(4): a(f"v_mov_b32 v{28+j}, s{4+j}")
    a("v_mov_b32 v32, 0")
    a("s_mov_b64 exec, 1")
    a("buffer_store_dwordx4 v[28:31], v32, s[28:31], 0 offen")
    L("L_fin")
    a("s_cmp_eq_u32 s95, 0")
    a(f"s_cbranch_scc1 {END}")
    if not stamps: a("s_barrier", "waves 0-3 have ended: their partials are in L2")
    a("buffer_wbl2 sc1")
    a("s_waitcnt vmcnt(0)")
    a(f"s_branch {END}" if stamps else "s_endpgm")

    L("L_o2")
    C("long wait: look at the written-through h block of the line instead")
    a("s_lshl_b32 s98, s98, 4")
    a(f"s_sub_u32 s98, s98, {0x80000 - WS_H}")
    L("L_o2_poll")
    a("buffer_load_dwordx4 v[44:47], v12, s[28:31], s98 offen sc1")
    a("buffer_load_dwordx4 v[48:51], v12, s[28:31], s98 offen offset:1024 sc1")
    a("s_waitcnt vmcnt(0)")
    for j in range(8): a(f"v_xor_b32 v{44+j}, s{44+(j&3)}, v{44+j}")
    a("v_or3_b32 v52, v44, v45, v46"); a("v_or3_b32 v53, v47, v48, v49"); a("v_or3_b32 v52, v52, v50, v51")
    a("v_or_b32 v52, v52, v53"); a("v_and_b32 v52, 0xffff, v52")
    a("v_cmp_ne_u32 vcc, 0, v52"); a("s_cbranch_vccz L_o_ok")
    fallback("L_o2_poll")
    L("L_router")
    a("s_waitcnt vmcnt(11)")
    if xb: a("s_barrier")
    a("s_barrier")
    a("s_waitcnt vmcnt(3)")
    a("v_mov_b32 v36, 0")
    for j in range(8):
        a(f"v_dot2_f32_bf16 v36, v{64+j}, v{72+j}, v36")
    for ctl in ["quad_perm:[1,0,3,2]", "quad_perm:[2,3,0,1]", "row_half_mirror", "row_mirror"]:
        a("s_nop 2")
        a(f"v_add_f32_dpp v36, v36, v36 {ctl} row_mask:0xf bank_mask:0xf")
    a("v_mov_b32 v37, v36")
    a("s_nop 1")
    a("v_permlane16_swap_b32 v36, v37")
    a("v_add_f32 v36, v36, v37")
    a("v_mov_b32 v37, v36")
    a("s_nop 1")
    a("v_permlane32_swap_b32 v36, v37")
    a("v_add_f32 v36, v36, v37")
    a("v_cvt_pk_bf16_f32 v36, v36, v36")
    a("v_and_b32 v36, 0xffff0000, v36", "r")
    a("v_mul_f32 v36, 0xbfb8aa3b, v36")
    a("v_exp_f32 v36, v36")
    a("s_nop 0")
    a("v_add_f32 v36, 1.0, v36")
    a("v_rcp_f32 v36, v36")
    a("s_and_b32 s64, s44, 0xffff")
    a("v_cvt_pk_bf16_f32 v36, v36, v36")
    a("v_lshl_or_b32 v36, v36, 16, s64")
    for j in range(1, 4): a(f"v_mov_b32 v{36+j}, s{44+j}")
    for n in (1, 0):
        a("s_barrier")
        a(f"s_waitcnt vmcnt({n})")
    a("s_barrier")
    stamp(2)
    a("s_mov_b64 exec, 0xff")
    if not noplain: a("buffer_store_dwordx4 v[36:39], v12, s[28:31], s62 offen")
    a("s_xor_b32 s62, s62, 0x4000")
    a("s_barrier")
    a("buffer_store_dwordx4 v[36:39], v12, s[28:31], s62 offen sc1", "written-through copy for readers on other XCDs")
    a("s_mov_b64 exec, -1")
    a("s_branch L_defer")

    if probe >= 0:
        L("L_stamp")
        a("s_waitcnt lgkmcnt(0)")
        a(f"s_sub_u32 s90, s{76+2*probe}, s76")
        a("s_lshl_b32 s90, s90, 2")
        a("s_sub_u32 s90, 6000, s90" if neg else "s_add_u32 s90, s90, 1500")
        a(f"s_cmp_eq_u32 s{76+2*probe}, 0")
        a("s_cselect_b32 s90, 1500, s90")
        if probe in (5, 6):
            a("s_cmp_lg_u32 s3, 7")
            a("s_cselect_b32 s90, 1500, s90")
        a("s_min_u32 s90, s90, 100000")
        L("L_spin")
        a("s_sleep 2")
        a("s_memrealtime s[92:93]")
        a("s_waitcnt lgkmcnt(0)")
        a("s_sub_u32 s92, s92, s76")
        a("s_cmp_lt_u32 s92, s90")
        a("s_cbranch_scc1 L_spin")
    elif stamps:
        L("L_stamp")
        a("s_mov_b64 exec, -1")
        a("s_waitcnt lgkmcnt(0)")
        L("L_spin")
        a("s_sleep 8")
        a("s_memrealtime s[92:93]")
        a("s_waitcnt lgkmcnt(0)")
        a("s_sub_u32 s92, s92, s76")
        a("s_cmp_lt_u32 s92, 1200")
        a("s_cbranch_scc1 L_spin")
        a("s_add_u32 s40, s28, 0x8000000"); a("s_addc_u32 s41, s29, 0")
        a("s_mov_b32 s42, 0x100000"); a("s_mov_b32 s43, 0x20000")
        a("s_lshl3_add_u32 s90, s2, s3"); a("s_lshl_b32 s90, s90, 6")
        for j in range(14): a(f"v_mov_b32 v{100+j}, s{76+j}")
        a("v_mov_b32 v114, 0x54414D50"); a("v_mov_b32 v115, 0x53"); a("v_mov_b32 v116, 0")
        a("s_mov_b64 exec, 1")
        for j in range(4): a(f"buffer_store_dwordx4 v[{100+4*j}:{103+4*j}], v116, s[40:43], s90 offen offset:{16*j}")
    L("L_end")
    a("s_endpgm")
    return HEADER.format(kn=KN, lds=LDS) + "\n".join(o) + FOOTER.format(kn=KN)

if __name__ == "__main__":
    out = sys.argv[1]
    kw = {}
    for arg in sys.argv[2:]:
        k, v = arg.split("=")
        kw[k] = int(v)
    open(out, "w").write(gen(**kw))
```

```python
import sys

KN = "standalone__moe_arch_mod__decode_kernel"
HEADER = """; Kernarg layout for this problem (64 bytes, ptrs only, base s[0:1]):
;
;
; @launch grid=(256,1,1) block=(512,1,1) lds={lds}
.amdgcn_target "amdgcn-amd-amdhsa--gfx950"
.text
.globl {kn}
.p2align 8
.type {kn},@function
{kn}:
"""
FOOTER = """
.section .rodata,"a"
.p2align 6
.amdhsa_kernel {kn}
  .amdhsa_next_free_vgpr 160
  .amdhsa_next_free_sgpr 102
  .amdhsa_accum_offset 160
  .amdhsa_group_segment_fixed_size 0
  .amdhsa_kernarg_size 64
  .amdhsa_user_sgpr_count 2
  .amdhsa_user_sgpr_kernarg_segment_ptr 1
  .amdhsa_system_sgpr_workgroup_id_x 1
  .amdhsa_float_denorm_mode_32 3
.end_amdhsa_kernel
"""
WS_RS, WS_H, WS_PART, WS_P, WS_SIZE = 0x1000, 0x10000, 0x40000, 0x200000, 0x400000
L_T, L_X, L_H, LDS = 0x8000, 0x18000, 0x1A000, 0x1B000
CJ = [0x2B5, 0x13F, 0x3D1, 0x088]
XV, WV = 64, 128

def gen(stamps=0, w3=0, wh=1, wr=0, pa=0, sa=0, pt=1, rm=0, db=1, h7=1, rdb=1, hy=1, bb=-1, tl=1, dbg=0, xb=0, tf=0, notouch=0, probe=-1, neg=0, al0=1, hs=2, noplain=0, thr=0, thc=2, fs=0, w4=1, ms=0, w0=0, swp=2, nr=0, sl=0, al=0, pad=0, tb=8, limit=22, wb=31, forceremote=0):
    if probe >= 0: stamps = 1
    o = []
    def a(s, c=None): o.append("    " + s + (f"    ; {c}" if c else ""))
    def L(s): o.append(s + ":")
    def C(s): o.append("    ; " + s)
    TM = (1 << tb) - 1
    TF = [' sc1', '', ' nt', ' sc0 sc1'][tf]
    assert not (rm and h7) and pa == 0 and sa == 0 and pt == 1 and tl == 1 and hy == 1 and h7 == 1
    def stamp(k):
        if stamps: a(f"s_memrealtime s[{76+2*k}:{77+2*k}]")
    def fallback(lbl, count=True, extra=None):
        if count: a("s_add_u32 s75, s75, 1")
        a(f"s_and_b32 s74, s75, {wb}")
        a(f"s_cbranch_scc1 {lbl}")
        if extra: a(*extra)
        a("buffer_wbl2 sc1", "long wait: make this XCD's hand-offs visible to every other XCD")
        a(f"s_cmp_lt_u32 s75, {1 << limit}")
        a(f"s_cbranch_scc1 {lbl}")
        a("s_endpgm")
    def tr(n, addr, off):
        a(f"ds_read_b64_tr_b16 v[{WV+4*n}:{WV+1+4*n}], v{addr} offset:{off}")
        a(f"ds_read_b64_tr_b16 v[{WV+2+4*n}:{WV+3+4*n}], v{addr} offset:{off + 2048}")
    def p1(slots):
        for n, sl in enumerate(slots): tr(n, 6, sl*4096)
        nk = len(slots)
        for n, sl in enumerate(slots):
            a(f"s_waitcnt lgkmcnt({2*(nk-1-n)})")
            a(f"v_mfma_f32_16x16x32_bf16 v[40:43], v[{XV+4*sl}:{XV+3+4*sl}], v[{WV+4*n}:{WV+3+4*n}], v[40:43]")
    def publish(voff, sbase, t3, t0=44):
        a("s_mov_b32 exec_hi, 0")
        a("s_nop 6")
        if not nr:
            for j in range(4): a(f"v_add_u32 v{40+j}, {1 << (tb-1)}, v{40+j}")
        for j in range(4): a(f"v_bfi_b32 v{40+j}, v15, s{t0+j if j < 3 else t3}, v{40+j}")
        a(f"buffer_store_dwordx4 v[40:43], v{voff}, s[28:31], s{sbase} offen")
        a("s_mov_b32 exec_hi, -1")
    def wd_loads():
        a("s_lshl_b32 m0, s3, 12")
        for i, rows in enumerate([0, 16, 4, 20]):
            a(f"s_add_u32 s68, s70, {rows*2048 - i*1024}")
            a(f"buffer_load_dwordx4 v8, s[24:27], s68 offen offset:{i*1024} nt lds")
    def or8(ok):
        a("v_or3_b32 v52, v44, v45, v46"); a("v_or3_b32 v53, v47, v48, v49"); a("v_or3_b32 v52, v52, v50, v51")
        a("v_or_b32 v52, v52, v53"); a("v_and_b32 v52, v52, v15")
        a("v_cmp_ne_u32 vcc, 0, v52"); a(f"s_cbranch_vccz {ok}")
    def check8(ok, x3, t0=48):
        a("s_waitcnt vmcnt(0)")
        for j in range(8): a(f"v_xor_b32 v{44+j}, s{t0+(j&3) if (j&3) < 3 else x3}, v{44+j}")
        or8(ok)

    END = "L_stamp" if stamps else "L_end"
    if stamps:
        for j in range(76, 90): a(f"s_mov_b32 s{j}, 0")
    stamp(0)
    a("s_load_dwordx16 s[4:19], s[0:1], 0")
    a("s_cmp_ge_u32 s2, 256")
    a("s_cbranch_scc1 L_end")
    a("v_lshrrev_b32 v2, 6, v0")
    a("v_and_b32 v1, 63, v0", "lane")
    a("v_readfirstlane_b32 s3, v2", "wave")
    a("s_getpc_b64 s[66:67]")
    L("L_pc")
    a("v_lshlrev_b32 v54, 7, v1")
    a("s_cmp_lg_u32 s3, 7")
    a("s_cbranch_scc1 L_nopf")
    a("v_min_u32 v54, L_end-L_pc, v54")
    a("global_load_dword v60, v54, s[66:67]", "pull the code into L2 while the kernel arguments arrive")
    L("L_nopf")
    a("s_and_b32 s56, s2, 7", "m")
    if fs:
        a(f"s_lshl_b32 s57, s56, 2")
        a(f"s_lshr_b32 s56, {fs}, s57")
        a("s_and_b32 s56, s56, 7", "FFN column group of this XCD")
    a("s_bfe_u32 s57, s2, 0x20003", "kq")
    a("s_bfe_u32 s58, s2, 0x20005", "cbx")
    a("s_lshr_b32 s59, s2, 7", "mat")
    a("s_add_u32 s63, s56, 3")
    a("s_and_b32 s63, s63, 7")
    a("s_cmp_eq_u32 s63, 7")
    a("s_cselect_b32 s63, 3, s63", "js: the line of the group that is split four ways")
    a("s_mul_i32 s61, s56, 7")
    a("s_bfe_u32 s62, s2, 0x30004")
    a("s_cmp_ge_u32 s62, s63")
    a("s_addc_u32 s62, s62, 0")
    a("s_and_b32 s65, s57, 1")
    a("s_lshl_b32 s65, s65, 1")
    a("s_cmp_eq_u32 s58, 3")
    a("s_cselect_b32 s62, s63, s62")
    a("s_cselect_b32 s65, s57, s65", "first k-block / 8")
    a("s_cselect_b32 s64, 4, 8", "k-blocks per half")
    a("s_cselect_b32 s74, 16, 0", "LDS KBs skipped at the head of each half")
    a("s_add_u32 s62, s62, s61", "128-byte line within a weight row")
    a("v_lshrrev_b32 v17, 3, v1")
    a("v_and_b32 v17, 6, v17")
    a("v_xor_b32 v17, v17, v1")
    a("v_and_b32 v17, 7, v17")
    a("v_lshlrev_b32 v17, 4, v17", "swizzled 16-byte piece within a line")
    a("v_bfe_u32 v16, v1, 3, 2")
    a("v_lshrrev_b32 v9, 5, v1")
    a("v_lshl_add_u32 v16, v9, 3, v16", "row within the 8-row piece")
    a("v_mul_u32_u24 v4, 7168, v16")
    a("v_add_u32 v4, v4, v17", "gate/up voffset")
    a("s_lshr_b32 s66, s3, 2")
    if ms:
        if ms == 1: a("s_mov_b32 s17, s59" if False else "s_mov_b32 s97, s59")
        else:
            a("s_bfe_u32 s97, s2, 0x10004")
            if ms == 3: a("s_xor_b32 s97, s97, s59")
        a("s_xor_b32 s67, s66, s97", "some workgroups walk their two K halves in the other order")
        a("s_mul_i32 s67, s67, s64")
    else:
        a("s_mul_i32 s67, s66, s64")
    a("s_lshl3_add_u32 s67, s65, s67")
    a("s_lshl_b32 s67, s67, 3")
    a("s_and_b32 s68, s3, 1")
    a("s_lshl2_add_u32 s67, s68, s67")
    a("s_bfe_u32 s68, s3, 0x10001")
    a("s_add_u32 s67, s67, s68")
    a(f"s_mul_i32 s67, s67, {4*7168}")
    a("s_lshl_b32 s68, s62, 7")
    a("s_add_u32 s92, s67, s68", "first piece of this wave")
    a("s_and_b32 s68, s3, 3")
    a("s_lshl_b32 s66, s66, 5")
    a("s_add_u32 s66, s66, s68")
    a("s_add_u32 s66, s66, s74")
    a("s_lshl_b32 s66, s66, 10")
    a(f"s_add_u32 s90, s66, {L_T}")
    a(f"s_mov_b32 s93, {32*7168}")
    a("s_mov_b32 s22, 7340032"); a("s_mov_b32 s23, 0x20000")
    a("s_cmp_ge_u32 s3, 4")
    a("s_cbranch_scc1 L_addr")
    a("s_cmp_eq_u32 s59, 0")
    a("s_mov_b32 m0, s90")
    a("s_waitcnt lgkmcnt(0)")
    L("L_issue")
    a("s_cselect_b64 s[20:21], s[8:9], s[10:11]")
    a("s_cmp_eq_u32 s58, 3")
    a("s_cbranch_scc1 L_short")
    for kb in range(8):
        if kb == 4: L("L_short")
        if thr >> kb & 1:
            a(f"s_cmp_lt_u32 s58, {thc}")
            a(f"s_cbranch_scc1 L_thr{kb}")
            a("s_waitcnt vmcnt(0)")
            L(f"L_thr{kb}")
        if kb == bb:
            a("s_cmp_lt_u32 s3, 4")
            a("s_cbranch_scc1 L_bb")
            a(f"s_waitcnt vmcnt({bb})")
            L("L_bb")
        a("buffer_load_dwordx4 v4, s[20:23], s92 offen nt lds")
        if kb < 7:
            a("s_addk_i32 m0, 0x1000")
            a("s_add_u32 s92, s92, s93")
    a("s_cmp_ge_u32 s3, 4")
    a("s_cbranch_scc1 L_tags")
    L("L_addr")
    a("v_lshl_add_u32 v8, v16, 11, v17", "w_down voffset")
    a("v_and_b32 v18, 7, v1")
    a("v_lshlrev_b32 v18, 4, v18")
    a("v_bfe_u32 v10, v1, 3, 1")
    a("v_lshl_add_u32 v10, v10, 11, v18")
    a("v_bfe_u32 v11, v1, 4, 1")
    a("v_lshl_add_u32 v10, v11, 7, v10", "phase-1 partial store offset")
    a("v_lshlrev_b32 v12, 4, v1")
    a("s_mov_b64 s[26:27], s[22:23]")
    a(f"s_mov_b32 s30, {WS_SIZE}"); a("s_mov_b32 s31, s23")
    a("s_movk_i32 s34, 16384"); a("s_mov_b32 s35, s23")
    a("s_mov_b64 s[38:39], s[34:35]")
    a("s_movk_i32 s42, 2048"); a("s_mov_b32 s43, s23")
    C("partial slot: (line*4 + t)*4096 + [cbx = 3: (kq>>1)*1024] + mat*512 + (kq&1)*256")
    a("s_lshl2_add_u32 s60, s59, s57", "q = 4*mat + kq")
    a("s_lshl2_add_u32 s69, s62, s68")
    a("s_lshr_b32 s52, s57, 1")
    a("s_cmp_eq_u32 s58, 3")
    a("s_cselect_b32 s52, s52, 0")
    a("s_lshl2_add_u32 s69, s69, s52")
    a("s_lshl1_add_u32 s69, s69, s59")
    a("s_and_b32 s52, s57, 1")
    a("s_lshl1_add_u32 s69, s69, s52")
    a("s_lshl_b32 s69, s69, 8")
    a(f"s_add_u32 s69, s69, {WS_PART}")
    a("s_lshl_b32 s96, s56, 10")
    a(f"s_add_u32 s96, s96, {WS_RS}")
    C("phase-2 tile: row block u = 8*mat + 4*(cbx&1) + kq, column line cb16 = 2*blk + (cbx < 2)")
    a("s_bfe_u32 s53, s2, 0x30003")
    a("s_lshl3_add_u32 s53, s59, s53")
    a("s_mul_i32 s55, s53, 7")
    a("s_add_u32 s55, s55, s3")
    a("s_lshl_b32 s70, s55, 16")
    a("s_and_b32 s52, s2, 7")
    a("s_cmp_eq_u32 s52, 0")
    a("s_cselect_b32 s101, 5, s52")
    a("s_cmp_eq_u32 s52, 5")
    a("s_cselect_b32 s101, 0, s101")
    a("s_cmp_lt_u32 s58, 2")
    a("s_addc_u32 s54, s101, s101")
    a("s_lshl_b32 s72, s62, 7")
    a(f"s_add_u32 s98, s72, {0x8000}", "'partials consumed' record of this workgroup's own line")
    a("s_cmp_ge_u32 s3, 4")
    a("s_cbranch_scc0 L_rest")
    C("waves 4-7: stage x (batches 2t, 2t+1), first touch of the lines this workgroup publishes into")
    a("s_lshl_b32 s74, s74, 4")
    a("s_lshl_b32 s64, s74, 15")
    a("s_lshl_b32 s65, s65, 9")
    a("s_lshl_b32 s72, s68, 12")
    a("s_add_u32 s65, s65, s72")
    a("s_lshr_b32 s72, s72, 1")
    a(f"s_add_u32 m0, s72, {L_X}")
    a("s_lshl_b32 s72, s68, 3")
    if ms:
        a("s_lshl_b32 s52, s97, 5")
        a("s_add_u32 s72, s72, s52")
        a("v_xor_b32 v9, s97, v9")
    a("v_xor_b32 v6, s72, v1")
    a("v_add_u32 v2, 1, v9")
    a("v_mul_u32_u24 v2, s74, v2")
    a("v_bfe_u32 v7, v6, 4, 1")
    a("v_xor_b32 v7, 1, v7")
    a("v_mul_u32_u24 v7, s64, v7")
    a("v_sub_u32 v2, v7, v2")
    a("v_lshl_add_u32 v13, v6, 4, v2")
    a("v_xor_b32 v6, 4, v6")
    a("v_lshl_add_u32 v14, v6, 4, v2")
    a("s_add_u32 s74, s65, 1024")
    a("s_waitcnt lgkmcnt(0)")
    a("s_mov_b64 s[32:33], s[4:5]"); a("s_mov_b64 s[28:29], s[18:19]"); a("s_mov_b64 s[40:41], s[6:7]")
    a("buffer_load_dwordx4 v13, s[32:35], s65 offen lds")
    a("buffer_load_dwordx4 v14, s[32:35], s74 offen offset:1024 lds")
    a("buffer_load_dword v61, v10, " + ("s[32:35], 0" if notouch & 1 else "s[28:31], s69") + " offen" + TF)
    a("s_lshl2_add_u32 s52, s3, s58")
    a("s_cmp_lg_u32 s52, 31")
    a("s_cbranch_scc1 L_rest")
    C("router operands: wave 7 of a cbx = 3 workgroup scores batch q")
    a("s_lshl_b32 s72, s60, 11")
    a("s_lshl_b32 s62, s60, 7")
    a("s_add_u32 s62, s62, s96")
    a("buffer_load_dwordx4 v[64:67], v12, s[32:35], s72 offen")
    a("buffer_load_dwordx4 v[68:71], v12, s[32:35], s72 offen offset:1024")
    a("buffer_load_dwordx4 v[72:75], v12, s[40:43], 0 offen")
    a("buffer_load_dwordx4 v[76:79], v12, s[40:43], 0 offen offset:1024")
    a("buffer_load_dword v62, v18, s[28:31], s62 offen" + TF)
    a("s_add_u32 s72, s61, s60")
    a("s_lshl_b32 s72, s72, 7")
    a(f"s_add_u32 s72, s72, {0x8000}")
    a("buffer_load_dword v63, v18, s[28:31], s72 offen" + TF)
    L("L_rest")
    a("s_load_dwordx4 s[44:47], s[18:19], 0", "epoch record")
    a("s_mov_b64 s[24:25], s[12:13]"); a("s_mov_b64 s[32:33], s[4:5]"); a("s_mov_b64 s[28:29], s[18:19]"); a("s_mov_b64 s[36:37], s[14:15]")
    a("s_lshl_b32 s52, s54, 7")
    a("s_add_u32 s70, s70, s52", "w_down k-block of this wave")
    a("s_and_b32 s100, s54, 7")
    a("s_cmp_eq_u32 s100, 3")
    a(f"s_cselect_b32 s100, {7-w3}, {7-w0}")
    if w0:
        a("s_cmp_eq_u32 s58, 2")
        a("s_cselect_b32 s100, 7, s100")
    a("s_cmp_eq_u32 s58, 3")
    a(f"s_cselect_b32 s100, {7-wh}, s100", "k-blocks from s100 on are queued before the publish")
    if w4:
        a("s_cmp_eq_u32 s56, 4")
        a("s_cselect_b32 s100, 7, s100")
    if wr:
        a("s_cmp_eq_u32 s58, 2")
        a(f"s_cselect_b32 s100, {7-wr}, s100")
    a("s_mov_b32 s75, 0")
    a("s_mov_b32 s73, 0x07060302")
    a(f"v_mov_b32 v15, {TM}")
    a("v_lshrrev_b32 v19, 4, v1")
    a("v_bfe_u32 v9, v1, 3, 2")
    a("v_xor_b32 v9, s3, v9")
    a("v_and_b32 v9, 3, v9")
    a("v_lshlrev_b32 v9, 5, v9")
    a("v_lshrrev_b32 v6, 2, v1")
    a("v_lshl_add_u32 v9, v6, 7, v9")
    a("v_and_b32 v7, 3, v1")
    a("v_lshl_add_u32 v9, v7, 3, v9", "transposing-read address (w_down image)")
    a(f"v_add_u32 v6, {L_T}, v9", "same for the gate/up image")
    a("v_bfe_u32 v54, v1, 2, 1")
    a("v_lshl_add_u32 v14, v7, 1, v54")
    a("v_lshlrev_b32 v14, 4, v14")
    a("v_lshl_add_u32 v14, v19, 7, v14")
    a(f"v_add_u32 v14, {L_H}, v14", "h operand address (rows kept in the order 2*(b&3) + (b>>2))")
    a("v_and_b32 v7, 7, v1")
    a("v_mul_u32_u24 v7, 1088, v7")
    a("v_lshl_add_u32 v7, v19, 4, v7")
    a(f"v_add_u32 v7, {L_X}, v7", "x operand address")
    a("v_lshlrev_b32 v13, 3, v0")
    a(f"v_add_u32 v13, {L_H}, v13")
    a("s_lshl_b32 s71, s55, 10")
    a(f"s_add_u32 s71, s71, {WS_H}")
    C("phase-2 partials reuse the producer's phase-1 lines: gather address of source r = (cbx&2)*4 + lane/8")
    a("s_and_b32 s64, s58, 2")
    a("s_lshl_b32 s64, s64, 2")
    a("v_lshrrev_b32 v11, 3, v1")
    a("v_add_u32 v11, s64, v11")
    a("v_lshrrev_b32 v26, 1, v11")
    a("v_cmp_le_u32 vcc, s63, v26")
    a("v_and_b32 v27, 1, v26")
    a("v_lshlrev_b32 v27, 10, v27")
    a("v_addc_co_u32 v26, vcc, 0, v26, vcc")
    a("v_lshlrev_b32 v26, 14, v26")
    a("s_lshl_b32 s64, s63, 14")
    a("v_add_u32 v27, s64, v27")
    a("v_cmp_lt_u32 vcc, 11, v11")
    a("v_and_b32 v11, 1, v11")
    a("v_lshl_add_u32 v11, v11, 8, v18")
    a("v_cndmask_b32 v26, v26, v27, vcc")
    a("v_add_u32 v11, v11, v26")
    a("s_lshr_b32 s72, s53, 2")
    a("s_lshl2_add_u32 s72, s61, s72")
    a("s_and_b32 s64, s53, 1")
    a("s_lshl1_add_u32 s72, s72, s64")
    a("s_lshl_b32 s72, s72, 4")
    a("s_bfe_u32 s64, s53, 0x10001")
    a("s_add_u32 s72, s72, s64")
    a("s_lshl_b32 s72, s72, 7")
    a(f"s_add_u32 s72, s72, {WS_PART}", "7m*16384 + nb*4096 + c*2048 + q*128")
    a("s_bfe_u32 s99, s53, 0x10001")
    a("s_lshl_b32 s99, s99, 2")
    a("v_add_u32 v20, s99, v19", "batch of this lane's output")
    a("v_lshlrev_b32 v21, 7, v20")
    a("s_lshr_b32 s97, s53, 2")
    a("s_lshl2_add_u32 s97, s54, s97")
    a("s_and_b32 s99, s53, 1")
    a("s_lshl1_add_u32 s97, s97, s99")
    a("s_lshl_b32 s97, s97, 4")
    a("v_lshrrev_b32 v22, 3, v18")
    a("v_lshl_add_u32 v22, v20, 11, v22", "x / out voffset")
    C("L2 prefetch target: rows 56*w + lane of the w_down tile of workgroup (mat, 2, kq)")
    a("s_mul_i32 s99, s3, 24*2048")
    a("s_add_u32 s99, s99, s70")
    a(f"s_sub_u32 s99, s99, {4*224*2048}")
    if tl:
        a("s_andn2_b32 s64, s53, 4")
        a("s_lshl2_add_u32 s64, s64, s58")
        a("s_add_u32 s64, s64, 2")
        a("s_mul_i32 s64, s64, 56*2048")
        a("s_lshl_b32 s68, s101, 8")
        a("s_add_u32 s64, s64, s68")
        a("s_cmp_lt_u32 s58, 2")
        a("s_cselect_b32 s99, s64, s99")
        a("s_cselect_b32 s91, s3, 0")
        if hs == 3:
            a("s_cmp_eq_u32 s58, 0")
            a("s_cselect_b32 s91, 0, s91")
        if hs == 4: a("s_mov_b32 s91, 0")
    a("v_lshlrev_b32 v25, 11, v1")
    C("reducer: column group 8*(7m + q) + w")
    a("s_add_u32 s67, s61, s60")
    a("s_lshl3_add_u32 s67, s67, s3")
    a("s_lshl_b32 s65, s67, 4")
    a(f"s_add_u32 s65, s65, {0x8000}")
    a("s_lshl_b32 s66, s67, 11")
    a(f"s_add_u32 s66, s66, {WS_PART}")
    a("s_lshl_b32 s67, s67, 8")
    a(f"s_add_u32 s67, s67, {WS_H}")
    a("v_lshlrev_b32 v56, 2, v1")
    a("s_getreg_b32 s94, hwreg(HW_REG_XCC_ID, 0, 3)")
    if forceremote: a("s_bfe_u32 s94, s2, 0x30003")
    a("s_mov_b32 s95, 0")
    a("s_cmp_ge_u32 s3, 4")
    a("s_cbranch_scc0 L_tags")
    a("s_cmp_eq_u32 s59, 0")
    a("s_mov_b32 m0, s90")
    a("s_branch L_issue")
    L("L_tags")
    a("s_waitcnt lgkmcnt(0)")
    for j in range(4): a(f"s_add_u32 s{44+j}, s{44+j}, {CJ[j]}", "tags of this launch" if j == 0 else None)
    for j in range(4): a(f"s_and_b32 s{48+j}, s{44+j}, {TM}")
    for j in range(4): a(f"s_add_u32 s{4+j}, s{44+j}, {CJ[j]}", "tags of the phase-2 partials = next epoch record" if j == 0 else None)
    for j in range(4): a(f"s_and_b32 s{8+j}, s{4+j}, {TM}")
    a("s_xor_b32 s94, s94, s11", "word 3 of a phase-2 partial also names the producer's XCD")
    a("v_and_b32 v54, 3, v1")
    a("v_mov_b32 v55, s44")
    for j in range(1, 4):
        a(f"v_mov_b32 v57, s{44+j}")
        a(f"v_cmp_eq_u32 vcc, {j}, v54")
        a("s_nop 1")
        a("v_cndmask_b32 v55, v55, v57, vcc")
    a("v_mov_b32 v58, v55")
    a("v_and_b32 v55, 0xffff, v55", "per-lane h tag")
    for j in range(4): a(f"v_mov_b32 v{40+j}, 0")

    C("---------------- phase 1: waves 4-7 pace the stages, waves 0-3 multiply")
    a("s_cmp_ge_u32 s3, 4")
    a("s_cbranch_scc0 L_comp")
    a("s_lshl2_add_u32 s52, s3, s58")
    a("s_cmp_eq_u32 s52, 31")
    a("s_cbranch_scc1 L_router")
    a("s_waitcnt vmcnt(8)")
    a("s_cmp_lg_u32 s58, 3")
    a("s_cbranch_scc1 L_s0")
    if sa:
        a("s_cmp_eq_u32 s3, 7")
        a("s_cbranch_scc1 L_r7")
        a("s_cmp_lt_u32 s3, s100")
        a("s_cbranch_scc1 L_r7")
        wd_loads()
        a("s_waitcnt vmcnt(8)")
        a("s_barrier")
        a("s_waitcnt vmcnt(7)")
        a("s_branch L_s0x")
        L("L_r7")
    a("s_waitcnt vmcnt(4)")
    L("L_s0")
    if xb: a("s_barrier")
    a("s_barrier")
    a("s_waitcnt vmcnt(3)")
    a("s_cmp_lt_u32 s3, s100")
    a("s_cbranch_scc1 L_s1")
    a("s_cmp_eq_u32 s3, 7")
    a("s_cbranch_scc1 L_s1")
    wd_loads()
    L("L_s0x")
    a("s_barrier")
    a("s_waitcnt vmcnt(5)")
    a("s_barrier")
    a("s_waitcnt vmcnt(4)")
    a("s_barrier")
    stamp(2)
    a("s_branch L_pub")
    L("L_s1")
    if dbg == 1: stamp(4)
    a("s_barrier")
    a("s_waitcnt vmcnt(1)")
    if dbg == 1: stamp(5)
    a("s_barrier")
    a("s_waitcnt vmcnt(0)")
    if dbg == 1: stamp(6)
    a("s_barrier")
    stamp(2)
    a("s_branch L_pub")
    L("L_comp")
    def xr(slots):
        for sl in slots:
            if sl == 0: a(f"ds_read_b128 v[{XV}:{XV+3}], v7")
            else:
                a(f"v_xor_b32 v18, {sl << 6}, v7")
                a(f"ds_read_b128 v[{XV+4*sl}:{XV+3+4*sl}], v18")
    if not xb: a("s_waitcnt vmcnt(0)")
    a("s_cmp_eq_u32 s58, 3")
    a("s_barrier")
    if dbg == 1: stamp(6)
    xr([4, 5, 6, 7, 12, 13, 14, 15])
    if xb:
        a("s_cbranch_scc1 L_shortx")
        a("s_waitcnt lgkmcnt(4)")
        xr([0, 1, 2, 3, 8, 9, 10, 11])
        L("L_shortx")
        a("s_waitcnt vmcnt(0)")
        a("s_barrier")
        a("s_cbranch_scc1 L_short0")
    else:
        a("s_cbranch_scc1 L_short0")
        a("s_waitcnt lgkmcnt(4)")
        xr([0, 1, 2, 3, 8, 9, 10, 11])
        a("s_waitcnt lgkmcnt(4)")
    p1([0, 1, 2, 3])
    L("L_short0")
    a("s_waitcnt lgkmcnt(4)")
    p1([4, 5, 6, 7])
    if swp:
        C("second half: the reads of a stage are queued right after its barrier, its MFMAs run one stage later")
        def mm(sl): a(f"v_mfma_f32_16x16x32_bf16 v[40:43], v[{XV+4*sl}:{XV+3+4*sl}], v[{WV+4*(sl-8)}:{WV+3+4*(sl-8)}], v[40:43]")
        a("s_barrier")
        a("s_cbranch_scc1 L_short1")
        for sl in (8, 9, 10, 11): tr(sl - 8, 6, sl*4096)
        L("L_short1")
        tr(4, 6, 12*4096)
        if swp == 2:
            a("s_cbranch_scc1 L_short2")
            for n, sl in enumerate((8, 9, 10, 11)):
                a(f"s_waitcnt lgkmcnt({8 - 2*n})")
                mm(sl)
            L("L_short2")
        a("s_barrier")
        tr(5, 6, 13*4096); tr(6, 6, 14*4096)
        a("s_waitcnt lgkmcnt(4)")
        if swp == 1:
            a("s_cbranch_scc1 L_short2")
            for sl in (8, 9, 10, 11): mm(sl)
            L("L_short2")
        mm(12)
        a("s_barrier")
        stamp(2)
        tr(7, 6, 15*4096)
        a("s_waitcnt lgkmcnt(2)")
        mm(13); mm(14)
        a("s_waitcnt lgkmcnt(0)")
        mm(15)
    else:
        a("s_barrier")
        a("s_cbranch_scc1 L_short1")
        p1([8, 9, 10, 11])
        L("L_short1")
        p1([12])
        a("s_barrier")
        p1([13, 14])
        a("s_barrier")
        stamp(2)
        p1([15])
    publish(10, 69, 47)
    L("L_pub")
    a("s_barrier", "the partials are queued ahead of the w_down loads")
    a("s_cmp_lt_u32 s58, 2")
    a("s_cbranch_scc1 L_defer")
    a("s_cmp_eq_u32 s60, 7")
    a("s_cbranch_scc1 L_defer")
    a("s_cmp_eq_u32 s58, 2")
    a("s_cbranch_scc1 L_red")
    if not sl:
        a(f"s_cmp_ge_u32 s3, {hs}")
        a("s_cbranch_scc1 L_defer")
        a("buffer_load_dword v61, v25, s[24:27], s99 offen", "L2 prefetch for the paired reducer")
    else:
        a("s_cmp_lt_u32 s3, 5")
        a("s_cbranch_scc1 L_defer")
        a("s_mov_b32 s91, 6")
        a(f"s_sub_u32 s99, s99, {5*56*2048}")
    a("s_branch L_defer")
    L("L_red")
    C("---------------- reducer: partials -> h")
    a("s_cmp_eq_u32 s60, s63")
    a("s_cbranch_scc1 L_r4_poll")
    if rdb:
        a("buffer_load_dwordx4 v[64:67], v12, s[28:31], s66 offen sc1")
        a("s_mov_b32 s52, 12")
        L("L_r2")
        for (cur, nxt) in ((64, 68), (68, 64)):
            a(f"buffer_load_dwordx4 v[{nxt}:{nxt+3}], v12, s[28:31], s66 offen sc1")
            a("s_waitcnt vmcnt(1)")
            for j in range(4): a(f"v_xor_b32 v{44+j}, s{48+j}, v{cur+j}")
            a("v_or3_b32 v52, v44, v45, v46")
            a("v_or_b32 v52, v52, v47")
            a("v_and_b32 v52, v52, v15")
            a("v_cmp_ne_u32 vcc, 0, v52")
            a("s_cbranch_vccz L_r_ok")
        a("s_sub_u32 s52, s52, 1")
        a("s_cbranch_scc0 L_r2")
    L("L_r_poll")
    a("buffer_load_dwordx4 v[44:47], v12, s[28:31], s66 offen sc1")
    a("s_waitcnt vmcnt(0)")
    for j in range(4): a(f"v_xor_b32 v{44+j}, s{48+j}, v{44+j}")
    a("v_or3_b32 v52, v44, v45, v46")
    a("v_or_b32 v52, v52, v47")
    a("v_and_b32 v52, v52, v15")
    a("v_cmp_ne_u32 vcc, 0, v52")
    a("s_cbranch_vccz L_r_ok")
    fallback("L_r_poll")
    for _ in range(pad): a("s_nop 0")
    L("L_r4_poll")
    a("buffer_load_dwordx4 v[44:47], v12, s[28:31], s66 offen sc1")
    a("buffer_load_dwordx4 v[48:51], v12, s[28:31], s66 offen offset:1024 sc1")
    check8("L_r4_ok", 51)
    fallback("L_r4_poll")
    L("L_r4_ok")
    for j in range(4): a(f"v_add_f32 v{44+j}, v{44+j}, v{48+j}")
    a("s_nop 0")
    L("L_r_ok")
    if dbg == 0: stamp(6)
    a("v_permlane16_swap_b32 v44, v45")
    a("v_permlane16_swap_b32 v46, v47")
    a("v_add_f32 v44, v44, v45")
    a("v_add_f32 v46, v46, v47")
    a("s_nop 1")
    a("v_permlane32_swap_b32 v44, v46", "v44 = x.Wg, v46 = x.Wu")
    a("v_cvt_pk_bf16_f32 v44, v44, v46")
    a("v_lshlrev_b32 v45, 16, v44")
    a("v_mul_f32 v46, 0xbfb8aa3b, v45")
    a("v_exp_f32 v46, v46")
    a("v_and_b32 v44, 0xffff0000, v44")
    a("v_add_f32 v46, 1.0, v46")
    a("v_rcp_f32 v46, v46")
    a("s_nop 0")
    a("v_mul_f32 v45, v45, v46", "silu")
    a("v_cvt_pk_bf16_f32 v45, v45, v45")
    a("v_and_b32 v45, 0xffff0000, v45")
    a("v_mul_f32 v45, v45, v44")
    a("v_cvt_pk_bf16_f32 v45, v45, v45")
    a("v_lshl_or_b32 v45, v45, 16, v55")
    a("buffer_store_dword v45, v56, s[28:31], s67 offen sc1")
    a("s_mov_b64 exec, 15")
    if not noplain: a("buffer_store_dword v58, v56, s[28:31], s65 offen")
    a("s_mov_b64 exec, -1")
    a("s_barrier")
    if rm:
        a("s_cmp_ge_u32 s3, 4")
        a("s_cbranch_scc1 L_defer")
        stamp(3)
        wd_loads()
        a("buffer_load_dwordx4 v[44:47], v12, s[28:31], s71 offen sc1")
        a("buffer_load_dwordx4 v[48:51], v12, s[28:31], s65 offen sc1")
        a("s_waitcnt vmcnt(2)")
        a("s_barrier")
        stamp(1)
        a("s_branch L_tr")

    C("---------------- phase 2")
    L("L_defer")
    stamp(3)
    a("s_cmp_eq_u32 s3, 7")
    a("s_cbranch_scc1 L_final")
    a("s_cmp_ge_u32 s3, s100")
    a("s_cbranch_scc1 L_p2")
    wd_loads()
    L("L_p2")
    if tl:
        a("s_cmp_lg_u32 s91, 6")
        a("s_cbranch_scc1 L_p2w")
        C("wave 6 of a cbx < 2 workgroup: queued behind the workgroup's own w_down pieces")
        a("buffer_load_dword v61, v25, s[24:27], s99 offen", "L2 prefetch for a reducer")
        a("s_waitcnt vmcnt(1)")
        a("s_branch L_p2b")
        L("L_p2w")
    a("s_waitcnt vmcnt(0)")
    L("L_p2b")
    a("s_barrier")
    stamp(1)
    if h7:
        a("buffer_load_dwordx4 v[44:47], v12, s[28:31], s71 offen sc1")
        a("s_cmp_ge_u32 s3, 4")
        a("s_cbranch_scc1 L_h_chk")
        for kb in range(7): tr(kb, 9, kb*4096)
        a("s_branch L_h_chk")
        L("L_h_poll")
        a("buffer_load_dwordx4 v[44:47], v12, s[28:31], s71 offen sc1")
        L("L_h_chk")
        a("s_waitcnt vmcnt(0)")
        a("v_perm_b32 v48, v45, v44, s73")
        a("v_perm_b32 v49, v47, v46, s73")
        a("ds_write_b64 v13, v[48:49]")
        for j in range(4): a(f"v_xor_b32 v{32+j}, s{44+j}, v{44+j}")
        a("v_or3_b32 v32, v32, v33, v34")
        a("v_or_b32 v32, v32, v35")
        a("v_and_b32 v32, 0xffff, v32")
        a("v_cmp_ne_u32 vcc, 0, v32")
        a("s_cbranch_vccz L_h_ok")
        fallback("L_h_poll")
        L("L_h_ok")
        a("s_cmp_ge_u32 s3, 4")
        a("s_waitcnt lgkmcnt(0)")
        a("s_barrier")
        a("s_cbranch_scc1 L_b")
    else:
        a("s_cmp_ge_u32 s3, 4")
        a("s_cbranch_scc1 L_b")
        a("buffer_load_dwordx4 v[44:47], v12, s[28:31], s71 offen sc1")
        a("buffer_load_dwordx4 v[48:51], v12, s[28:31], s65 offen sc1")
        L("L_tr")
        for kb in range(7): tr(kb, 9, kb*4096)
        a("s_branch L_h_chk")
        L("L_h_poll")
        a("buffer_load_dwordx4 v[44:47], v12, s[28:31], s71 offen sc1")
        a("buffer_load_dwordx4 v[48:51], v12, s[28:31], s65 offen sc1")
        L("L_h_chk")
        a("s_waitcnt vmcnt(0)")
        for j in range(8): a(f"v_xor_b32 v{32+j}, s{44+(j&3)}, v{44+j}")
        a("v_or3_b32 v32, v32, v33, v34"); a("v_or3_b32 v35, v35, v36, v37"); a("v_or3_b32 v32, v32, v38, v39")
        a("v_or_b32 v32, v32, v35")
        a("v_and_b32 v32, 0xffff, v32")
        a("v_cmp_ne_u32 vcc, 0, v32")
        for j in range(4): a(f"v_perm_b32 v{44+j}, v{45+2*j}, v{44+2*j}, s73")
        a("s_cbranch_vccz L_h_ok")
        fallback("L_h_poll")
        L("L_h_ok")
        a("ds_write_b64 v13, v[44:45]")
        a("ds_write_b64 v13, v[46:47] offset:2048")
        a("s_waitcnt lgkmcnt(0)")
        a("s_barrier")
    stamp(4)
    for kb in range(7):
        a(f"ds_read_b128 v[{XV+4*kb}:{XV+3+4*kb}], v14 offset:{kb*512}")
    for kb in range(7):
        a(f"s_waitcnt lgkmcnt({6-kb})")
        c = "0" if kb == 0 else "v[40:43]"
        a(f"v_mfma_f32_16x16x32_bf16 v[40:43], v[{XV+4*kb}:{XV+3+4*kb}], v[{WV+4*kb}:{WV+3+4*kb}], {c}")
    publish(10, 69, 94, 8)
    stamp(5)
    a("s_barrier")
    a("s_waitcnt vmcnt(0)")
    a(f"s_branch {END}" if stamps else "s_endpgm")
    L("L_b")
    if stamps:
        if not h7: a("s_barrier")
        a("s_barrier"); a(f"s_branch {END}")
    else:
        a("s_endpgm")

    C("---------------- final reduction (wave 7)")
    L("L_final")
    if not tl:
        if pt:
            a("s_cmp_ge_u32 s58, 2")
            a("s_cbranch_scc1 L_notouch")
            a("buffer_load_dword v63, v24, s[28:31], s98 offen sc1", "first touch of the inbox")
            if hy:
                a("s_andn2_b32 s64, s53, 4")
                a("s_lshl2_add_u32 s64, s64, s58")
                a("s_add_u32 s64, s64, 2")
                a("s_mul_i32 s64, s64, 56*2048")
                a("s_lshl_b32 s68, s101, 8")
                a("s_add_u32 s64, s64, s68")
                a("buffer_load_dword v61, v25, s[24:27], s64 offen")
            L("L_notouch")
    a("buffer_load_ushort v23, v22, s[32:35], s97 offen")
    L("L_rs_poll")
    a("buffer_load_dwordx4 v[24:27], v21, s[28:31], s96 offen sc1")
    a("s_waitcnt vmcnt(0)")
    for j in range(4): a(f"v_xor_b32 v{28+j}, s{44+j}, v{24+j}")
    a("v_and_b32 v28, 0xffff, v28")
    a("v_or3_b32 v28, v28, v29, v30")
    a("v_or_b32 v28, v28, v31")
    a("v_cmp_ne_u32 vcc, 0, v28")
    a("s_cbranch_vccz L_rs_ok")
    fallback("L_rs_poll", extra=("s_xor_b32 s96, s96, 0x4000", "alternate with the written-through copy"))
    L("L_rs_ok")
    a("v_and_b32 v24, 0xffff0000, v24", "sigmoid(r)")
    a("v_lshlrev_b32 v23, 16, v23", "x")
    a("s_barrier")
    C("the phase-1 lines may be overwritten once the reducer of this workgroup's line has consumed them")
    L("L_o_poll")
    a("buffer_load_dwordx4 v[44:47], v18, s[28:31], s98 offen sc1")
    a("s_waitcnt vmcnt(0)")
    for j in range(4): a(f"v_xor_b32 v{44+j}, s{44+j}, v{44+j}")
    a("v_or3_b32 v52, v44, v45, v46")
    a("v_or_b32 v52, v52, v47")
    a("v_cmp_ne_u32 vcc, 0, v52"); a("s_cbranch_vccz L_o_ok")
    a("s_add_u32 s75, s75, 1")
    a(f"s_cmp_lt_u32 s75, {wb+1}")
    a("s_cbranch_scc1 L_o_poll")
    a("s_branch L_o2")
    L("L_o_ok")
    a("s_barrier")
    a("s_barrier", "released once waves 0-3 have queued their partials")
    if db:
        a("buffer_load_dwordx4 v[64:67], v11, s[28:31], s72 offen sc1")
        a("buffer_load_dwordx4 v[68:71], v11, s[28:31], s72 offen offset:512 sc1")
        a("s_mov_b32 s52, 12")
        L("L_y2")
        for (cur, nxt) in ((64, 72), (72, 64)):
            a(f"buffer_load_dwordx4 v[{nxt}:{nxt+3}], v11, s[28:31], s72 offen sc1")
            a(f"buffer_load_dwordx4 v[{nxt+4}:{nxt+7}], v11, s[28:31], s72 offen offset:512 sc1")
            a("s_waitcnt vmcnt(2)")
            for j in range(8): a(f"v_xor_b32 v{44+j}, s{8+(j&3) if (j&3) < 3 else 94}, v{cur+j}")
            or8("L_y_ok")
        a("s_sub_u32 s52, s52, 1")
        a("s_cbranch_scc0 L_y2")
    L("L_y_poll")
    a("buffer_load_dwordx4 v[44:47], v11, s[28:31], s72 offen sc1")
    a("buffer_load_dwordx4 v[48:51], v11, s[28:31], s72 offen offset:512 sc1")
    check8("L_y_ok", 94, 8)
    a("s_add_u32 s75, s75, 1")
    a(f"s_cmp_lt_u32 s75, {wb+1}")
    a("s_cbranch_scc1 L_y_poll")
    C("long wait: accept sources on other XCDs too, and remember to write back before ending")
    a("s_mov_b32 s95, 1")
    a("v_and_b32 v47, -8, v47")
    a("v_and_b32 v51, -8, v51")
    or8("L_y_ok")
    fallback("L_y_poll", count=False)
    L("L_y_ok")
    stamp(5)
    for j in range(4): a(f"v_add_f32 v{44+j}, v{44+j}, v{48+j}")
    a("s_nop 1")
    a("v_permlane32_swap_b32 v44, v46"); a("v_permlane32_swap_b32 v45, v47")
    a("v_add_f32 v44, v44, v46"); a("v_add_f32 v45, v45, v47")
    a("s_nop 1")
    a("v_permlane16_swap_b32 v44, v45")
    a("v_add_f32 v44, v44, v45")
    a("s_nop 1")
    a("v_add_f32_dpp v44, v44, v44 row_ror:8 row_mask:0xf bank_mask:0xf")
    a("v_cvt_pk_bf16_f32 v44, v44, v44")
    a("v_and_b32 v44, 0xffff0000, v44", "y")
    a("v_mul_f32 v44, v44, v24")
    a("v_cvt_pk_bf16_f32 v44, v44, v44")
    a("v_and_b32 v44, 0xffff0000, v44", "y * r_sel")
    a("v_fma_f32 v44, v23, 0, v44")
    a("v_add_f32 v44, v23, v44")
    a("v_cvt_pk_bf16_f32 v44, v44, v44")
    a("s_mov_b32 exec_lo, 0x00ff00ff")
    a("s_mov_b32 exec_hi, 0x00ff00ff")
    a("buffer_store_short v44, v22, s[36:39], s97 offen")
    stamp(6)
    a("s_cmp_lg_u32 s2, 0")
    a("s_cbranch_scc1 L_fin")
    C("advance the epoch record: every workgroup has read it by now")
    for j in range(4): a(f"v_mov_b32 v{28+j}, s{4+j}")
    a("v_mov_b32 v32, 0")
    a("s_mov_b64 exec, 1")
    a("buffer_store_dwordx4 v[28:31], v32, s[28:31], 0 offen")
    L("L_fin")
    a("s_cmp_eq_u32 s95, 0")
    a(f"s_cbranch_scc1 {END}")
    if not stamps: a("s_barrier", "waves 0-3 have ended: their partials are in L2")
    a("buffer_wbl2 sc1")
    a("s_waitcnt vmcnt(0)")
    a(f"s_branch {END}" if stamps else "s_endpgm")

    L("L_o2")
    C("long wait: look at the written-through h block of the line instead")
    a("s_lshl_b32 s98, s98, 4")
    a(f"s_sub_u32 s98, s98, {0x80000 - WS_H}")
    L("L_o2_poll")
    a("buffer_load_dwordx4 v[44:47], v12, s[28:31], s98 offen sc1")
    a("buffer_load_dwordx4 v[48:51], v12, s[28:31], s98 offen offset:1024 sc1")
    a("s_waitcnt vmcnt(0)")
    for j in range(8): a(f"v_xor_b32 v{44+j}, s{44+(j&3)}, v{44+j}")
    a("v_or3_b32 v52, v44, v45, v46"); a("v_or3_b32 v53, v47, v48, v49"); a("v_or3_b32 v52, v52, v50, v51")
    a("v_or_b32 v52, v52, v53"); a("v_and_b32 v52, 0xffff, v52")
    a("v_cmp_ne_u32 vcc, 0, v52"); a("s_cbranch_vccz L_o_ok")
    fallback("L_o2_poll")
    L("L_router")
    a("s_waitcnt vmcnt(11)")
    if xb: a("s_barrier")
    a("s_barrier")
    a("s_waitcnt vmcnt(3)")
    a("v_mov_b32 v36, 0")
    for j in range(8):
        a(f"v_dot2_f32_bf16 v36, v{64+j}, v{72+j}, v36")
    for ctl in ["quad_perm:[1,0,3,2]", "quad_perm:[2,3,0,1]", "row_half_mirror", "row_mirror"]:
        a("s_nop 2")
        a(f"v_add_f32_dpp v36, v36, v36 {ctl} row_mask:0xf bank_mask:0xf")
    a("v_mov_b32 v37, v36")
    a("s_nop 1")
    a("v_permlane16_swap_b32 v36, v37")
    a("v_add_f32 v36, v36, v37")
    a("v_mov_b32 v37, v36")
    a("s_nop 1")
    a("v_permlane32_swap_b32 v36, v37")
    a("v_add_f32 v36, v36, v37")
    a("v_cvt_pk_bf16_f32 v36, v36, v36")
    a("v_and_b32 v36, 0xffff0000, v36", "r")
    a("v_mul_f32 v36, 0xbfb8aa3b, v36")
    a("v_exp_f32 v36, v36")
    a("s_nop 0")
    a("v_add_f32 v36, 1.0, v36")
    a("v_rcp_f32 v36, v36")
    a("s_and_b32 s64, s44, 0xffff")
    a("v_cvt_pk_bf16_f32 v36, v36, v36")
    a("v_lshl_or_b32 v36, v36, 16, s64")
    for j in range(1, 4): a(f"v_mov_b32 v{36+j}, s{44+j}")
    for n in (1, 0):
        a("s_barrier")
        a(f"s_waitcnt vmcnt({n})")
    a("s_barrier")
    stamp(2)
    a("s_mov_b64 exec, 0xff")
    if not noplain: a("buffer_store_dwordx4 v[36:39], v12, s[28:31], s62 offen")
    a("s_xor_b32 s62, s62, 0x4000")
    a("s_barrier")
    a("buffer_store_dwordx4 v[36:39], v12, s[28:31], s62 offen sc1", "written-through copy for readers on other XCDs")
    a("s_mov_b64 exec, -1")
    a("s_branch L_defer")

    if probe >= 0:
        L("L_stamp")
        a("s_waitcnt lgkmcnt(0)")
        a(f"s_sub_u32 s90, s{76+2*probe}, s76")
        a("s_lshl_b32 s90, s90, 2")
        a("s_sub_u32 s90, 6000, s90" if neg else "s_add_u32 s90, s90, 1500")
        a(f"s_cmp_eq_u32 s{76+2*probe}, 0")
        a("s_cselect_b32 s90, 1500, s90")
        if probe in (5, 6):
            a("s_cmp_lg_u32 s3, 7")
            a("s_cselect_b32 s90, 1500, s90")
        a("s_min_u32 s90, s90, 100000")
        L("L_spin")
        a("s_sleep 2")
        a("s_memrealtime s[92:93]")
        a("s_waitcnt lgkmcnt(0)")
        a("s_sub_u32 s92, s92, s76")
        a("s_cmp_lt_u32 s92, s90")
        a("s_cbranch_scc1 L_spin")
    elif stamps:
        L("L_stamp")
        a("s_mov_b64 exec, -1")
        a("s_waitcnt lgkmcnt(0)")
        L("L_spin")
        a("s_sleep 8")
        a("s_memrealtime s[92:93]")
        a("s_waitcnt lgkmcnt(0)")
        a("s_sub_u32 s92, s92, s76")
        a("s_cmp_lt_u32 s92, 1200")
        a("s_cbranch_scc1 L_spin")
        a("s_add_u32 s40, s28, 0x8000000"); a("s_addc_u32 s41, s29, 0")
        a("s_mov_b32 s42, 0x100000"); a("s_mov_b32 s43, 0x20000")
        a("s_lshl3_add_u32 s90, s2, s3"); a("s_lshl_b32 s90, s90, 6")
        for j in range(14): a(f"v_mov_b32 v{100+j}, s{76+j}")
        a("v_mov_b32 v114, 0x54414D50"); a("v_mov_b32 v115, 0x53"); a("v_mov_b32 v116, 0")
        a("s_mov_b64 exec, 1")
        for j in range(4): a(f"buffer_store_dwordx4 v[{100+4*j}:{103+4*j}], v116, s[40:43], s90 offen offset:{16*j}")
    L("L_end")
    a("s_endpgm")
    H = HEADER.format(kn=KN, lds=LDS)
    if al: H = H.replace(".p2align 8\n", ".p2align 12\n.p2align 8\n")
    return H + "\n".join(o) + FOOTER.format(kn=KN)

if __name__ == "__main__":
    out = sys.argv[1]
    kw = {}
    for arg in sys.argv[2:]:
        k, v = arg.split("=")
        kw[k] = int(v)
    open(out, "w").write(gen(**kw))
```
